```python
import torch

def _softmax(x, axis=-1):
    return torch.softmax(x, dim=axis)
def _gelu(x):
    return torch.nn.functional.gelu(x, approximate="tanh")
def _silu(x):
    return torch.nn.functional.silu(x)
def _sigmoid(x):
    return torch.sigmoid(x)
def _layernorm(x, axis=-1, eps=1e-5):
    m = x.mean(dim=axis, keepdim=True)
    v = x.var(dim=axis, keepdim=True, unbiased=False)
    return (x - m) / torch.sqrt(v + eps)
def _scatter_add(tgt, idx, src, axis=0):
    return tgt.clone().index_add_(axis, idx, src)
def _segment_sum(src, seg, n):
    out = torch.zeros((n,) + src.shape[1:], dtype=src.dtype)
    return out.index_add_(0, seg, src)
def _pad(x, pw):
    flat = tuple(v for pair in reversed(pw) for v in pair)
    return torch.nn.functional.pad(x, flat)

kernel_name = 'recurrent_scan__spectral_fnet__geglu_ffn__prompt'

def setup_inputs():

    _w = (lambda a: (lambda t: t.to(torch.bfloat16) if t.is_floating_point() else t)(torch.as_tensor(a)))
    def _A_setup():
        B, S, D = 1, 2048, 512
        ns = torch.arange(S)[:, None] * torch.arange(S)[None, :]
        nd = torch.arange(D)[:, None] * torch.arange(D)[None, :]
        Ws_re = torch.cos(-2.0 * torch.pi * ns / S).to(float)
        Ws_im = torch.sin(-2.0 * torch.pi * ns / S).to(float)
        Wd_re = torch.cos(-2.0 * torch.pi * nd / D).to(float)
        Wd_im = torch.sin(-2.0 * torch.pi * nd / D).to(float)
        return {
            "x": _w((lambda *s: torch.randn(*s, dtype=torch.bfloat16) * 0.05)(B, S, D)),
            "dft_seq_re": _w(Ws_re),
            "dft_seq_im": _w(Ws_im),
            "dft_hid_re": _w(Wd_re),
            "dft_hid_im": _w(Wd_im),
        }
    _A_in = _A_setup()

    def _B_setup():
        B, S, D, F = 1, 2048, 512, 1376
        return {
            "x": _w((lambda *s: torch.randn(*s, dtype=torch.bfloat16) * 0.05)(B, S, D)),
            "w_gate": _w((lambda *s: torch.randn(*s, dtype=torch.bfloat16) * 0.05)(D, F)),
            "w_up": _w((lambda *s: torch.randn(*s, dtype=torch.bfloat16) * 0.05)(D, F)),
            "w_down": _w((lambda *s: torch.randn(*s, dtype=torch.bfloat16) * 0.05)(F, D)),
        }
    _B_in = _B_setup()

    return {
        "A_x": _A_in["x"],
        "A_dft_seq_re": _A_in["dft_seq_re"],
        "A_dft_seq_im": _A_in["dft_seq_im"],
        "A_dft_hid_re": _A_in["dft_hid_re"],
        "A_dft_hid_im": _A_in["dft_hid_im"],
        "B_x": _B_in["x"],
        "B_w_gate": _B_in["w_gate"],
        "B_w_up": _B_in["w_up"],
        "B_w_down": _B_in["w_down"],
    }

def reference(A_x, A_dft_seq_re, A_dft_seq_im, A_dft_hid_re, A_dft_hid_im, B_x, B_w_gate, B_w_up, B_w_down):
    def _A_ref(x, dft_seq_re, dft_seq_im, dft_hid_re, dft_hid_im):
        a = torch.einsum("bsd,ed->bse", x, dft_hid_re)
        b = torch.einsum("bsd,ed->bse", x, dft_hid_im)
        y = torch.einsum("ts,bse->bte", dft_seq_re, a) - torch.einsum("ts,bse->bte", dft_seq_im, b)
        return y

    def _B_ref(x, w_gate, w_up, w_down):
        return (_gelu(x @ w_gate) * (x @ w_up)) @ w_down

    x = A_x
    xn = _layernorm(x, axis=-1)
    s = _A_ref(xn, A_dft_seq_re, A_dft_seq_im, A_dft_hid_re, A_dft_hid_im)
    g = _silu(_B_ref(xn, B_w_gate, B_w_up, B_w_down))
    return x + s * g
```

```python
from gen import Asm, vr, ar, sr, f2u, stamp, emit_stamp_store, T_OFF, WS_USED, LOG2E

GC = 2.0 * 0.7978845608028654 * LOG2E

sX, sWg, sWu, sWs, sHr, sHi = 8, 12, 16, 20, 24, 28
s_w, s_rb, s_g, s_a = 32, 33, 34, 35
s_t0, s_t1, s_t2 = 36, 37, 38
s_ones = 39
v_lane, v_t0, v_t1, v_t2, v_t3 = 1, 2, 3, 4, 5
vXd = 8


def interleave(A, mfmas, fillers, lead=0):
    n = len(mfmas)
    k = 0
    for _ in range(lead):
        if k < len(fillers):
            A(fillers[k]); k += 1
    rest = len(fillers) - k
    done = 0
    for j, m in enumerate(mfmas):
        A(m)
        want = (rest * (j + 1) + n - 1) // n
        while done < want:
            A(fillers[k]); k += 1; done += 1


def stats_finalize(A, vS, vQ, vmu, vk1, vk3, vci, vrs, t0, t1):
    A(f"""
    v_add_f32 v{vS}, v{vS}, v{vS+1}
    v_add_f32 v{vQ}, v{vQ}, v{vQ+1}
    v_mov_b32 v{vS+1}, v{vS}
    v_mov_b32 v{vQ+1}, v{vQ}
    s_nop 1
    v_permlane32_swap_b32 v{vS}, v{vS+1}
    v_permlane32_swap_b32 v{vQ}, v{vQ+1}
    s_nop 0
    v_add_f32 v{vS}, v{vS}, v{vS+1}
    v_add_f32 v{vQ}, v{vQ}, v{vQ+1}
    v_mul_f32 v{vS}, {hex(f2u(-1.0/512))}, v{vS}
    v_mul_f32 v{vQ}, {hex(f2u(1.0/512))}, v{vQ}
    v_cvt_pk_bf16_f32 v{vmu}, v{vS}, v{vS}
    v_fma_f32 v{vQ}, -v{vS}, v{vS}, v{vQ}
    v_max_f32 v{vQ}, 0, v{vQ}
    v_cvt_pk_bf16_f32 v{vQ}, v{vQ}, v{vQ}
    v_and_b32 v{vQ}, 0xffff0000, v{vQ}
    v_add_f32 v{vQ}, {hex(f2u(1e-5))}, v{vQ}
    v_cvt_pk_bf16_f32 v{vQ}, v{vQ}, v{vQ}
    v_and_b32 v{vQ}, 0xffff0000, v{vQ}
    v_sqrt_f32 v{vQ}, v{vQ}
    s_nop 0
    v_cvt_pk_bf16_f32 v{vQ}, v{vQ}, v{vQ}
    v_and_b32 v{vQ}, 0xffff0000, v{vQ}
    v_rcp_f32 v{vrs}, v{vQ}
    v_mul_f32 v{vci}, v{vQ}, v{vQ}
    v_mul_f32 v{vk1}, {hex(f2u(-GC))}, v{vrs}
    v_mul_f32 v{t0}, v{vrs}, v{vrs}
    v_mul_f32 v{t0}, {hex(f2u(0.044715))}, v{t0}
    v_mul_f32 v{vk3}, v{vk1}, v{t0}
    v_mov_b32 v{vk1+1}, v{vk1}
    v_mov_b32 v{vk3+1}, v{vk3}
    v_mov_b32 v{vci+1}, v{vci}
""")


def gelu_unit(acc, tmp, out, vk1, vk3, vci):
    L = []
    for k in range(0, 8, 2):
        L.append(f"v_pk_mul_f32 {vr(tmp+k,2)}, {vr(acc+k,2)}, {vr(acc+k,2)}")
    for k in range(0, 8, 2):
        L.append(f"v_pk_fma_f32 {vr(tmp+k,2)}, {vr(tmp+k,2)}, {vr(vk3,2)}, {vr(vk1,2)}")
    for k in range(0, 8, 2):
        L.append(f"v_pk_mul_f32 {vr(tmp+k,2)}, {vr(tmp+k,2)}, {vr(acc+k,2)}")
    for k in range(8):
        L.append(f"v_exp_f32 v{tmp+k}, v{tmp+k}")
    for k in range(0, 8, 2):
        L.append(f"v_pk_mul_f32 {vr(acc+k,2)}, {vr(acc+k,2)}, {vr(acc+8+k,2)}")
    for k in range(0, 8, 2):
        L.append(f"v_pk_fma_f32 {vr(tmp+k,2)}, {vr(tmp+k,2)}, {vr(vci,2)}, {vr(vci,2)}")
    for k in range(8):
        L.append(f"v_rcp_f32 v{tmp+k}, v{tmp+k}")
    L.append("s_nop 0")
    for k in range(0, 8, 2):
        L.append(f"v_pk_mul_f32 {vr(acc+k,2)}, {vr(acc+k,2)}, {vr(tmp+k,2)}")
    for k in range(4):
        L.append(f"v_cvt_pk_bf16_f32 v{out+k}, v{acc+2*k}, v{acc+2*k+1}")
    return L


def gen_k1(A, opt):
    st_aux = opt.get('h_store_aux', '')
    A(f"""
k1_kernel:
    s_cmp_ge_u32 s2, 256
    s_cbranch_scc1 K1_end
    s_load_dwordx2 {sr(sX,2)}, s[0:1], 0
    s_load_dwordx2 {sr(sWg,2)}, s[0:1], 48
    s_load_dwordx2 {sr(sWu,2)}, s[0:1], 56
    s_load_dwordx2 {sr(sWs,2)}, s[0:1], 88
    s_load_dwordx2 {sr(sHr,2)}, s[0:1], 24
    s_load_dwordx2 {sr(sHi,2)}, s[0:1], 32
""")
    if opt.get('stamps'):
        A("s_memrealtime s[66:67]")
    stamp(A, opt, 0)
    A(f"""
    v_lshrrev_b32 v{v_t0}, 6, v0
    v_and_b32 v{v_lane}, 63, v0
    s_mov_b32 s{sX+2}, {2048*1024}
    s_mov_b32 s{sX+3}, 0x20000
    v_readfirstlane_b32 s{s_w}, v{v_t0}
    s_mov_b32 s{sWg+2}, {512*2752}
    s_mov_b32 s{sWg+3}, 0x20000
    s_mov_b32 s{sWu+2}, {512*2752}
    s_mov_b32 s{sWu+3}, 0x20000
    s_lshr_b32 s{s_t0}, s2, 3
    s_and_b32 s{s_rb}, s{s_t0}, 7
    s_lshr_b32 s{s_g}, s{s_t0}, 3
    s_and_b32 s{s_t0}, s2, 1
    s_lshl_b32 s{s_t0}, s{s_t0}, 3
    s_add_u32 s{s_rb}, s{s_rb}, s{s_t0}
    s_and_b32 s{s_t0}, s2, 6
    s_lshl_b32 s{s_t0}, s{s_t0}, 1
    s_add_u32 s{s_g}, s{s_g}, s{s_t0}
    s_lshl_b32 s{s_a}, s{s_rb}, 2
    s_add_u32 s{s_a}, s{s_a}, s{s_w}
    v_lshrrev_b32 v{v_t0}, 3, v{v_lane}
    v_and_b32 v{v_t1}, 7, v{v_lane}
    v_lshrrev_b32 v{v_t2}, 4, v{v_lane}
    v_xor_b32 v{v_t1}, v{v_t1}, v{v_t2}
    v_lshlrev_b32 v{v_t1}, 4, v{v_t1}
    v_lshl_add_u32 v{vXd}, v{v_t0}, 16, v{v_t1}
    v_xor_b32 v{vXd+1}, 64, v{vXd}
    v_add_u32 v{vXd+2}, {2*(8*65536-1024)}, v{vXd}
    v_add_u32 v{vXd+3}, {3*(8*65536-1024)}, v{vXd+1}
    v_add_u32 v{vXd+1}, {8*65536-1024}, v{vXd+1}
    s_mov_b32 s{s_ones}, 0x3f803f80
    s_cmp_ge_u32 s{s_g}, 14
    s_cbranch_scc1 K1_dft
""")
    lds_f = gen_ffn(A, opt, st_aux)
    lds_d = gen_dft(A, opt, st_aux)
    A("K1_end:")
    A("s_endpgm")
    return max(lds_f, lds_d), 384, 256


def gen_ffn(A, opt, st_aux):
    SLOT = 41024
    WIMG = 16384
    UPO = 12320
    EXC = 3 * SLOT
    lds = EXC + 6 * 1024
    s_ck, s_xb, s_wb, s_xo, s_wo = 40, 41, 42, 43, 44
    s_mx, s_mg, s_mu = 45, 46, 47
    s_dslot, s_rslot = 48, 49
    s_p, s_dl = 50, 51
    s_ho = 52
    s_slot = 53
    vWd = 12
    vXr = 16
    vWr = 20
    vS, vQ = 24, 26
    vC = 28
    vXf = 36
    vWf = 44
    acc = 96
    rot = opt.get('k1_rot', 0)

    A(f"s_mul_i32 s{s_t0}, s{s_w}, 192")
    A(f"s_mov_b32 s{s_t1}, 0x15555556")
    for i in range(3):
        A(f"""
    s_add_u32 s{s_t2}, s{s_t0}, {64*i}
    v_add_u32 v{v_t2}, s{s_t2}, v{v_lane}
    v_mul_hi_u32 v{v_t3}, v{v_t2}, s{s_t1}
    v_lshlrev_b32 v{v_t2}, 4, v{v_t2}
    v_mul_u32_u24 v{v_t3}, {2752-192}, v{v_t3}
    v_add_u32 v{vWd+i}, v{v_t2}, v{v_t3}
""")
        if i:
            A(f"v_subrev_u32 v{vWd+i}, {1024*i}, v{vWd+i}")
    if rot == 8:
        A(f"s_lshl_b32 s{s_ck}, s{s_g}, 1\ns_add_u32 s{s_ck}, s{s_ck}, s{s_rb}\ns_and_b32 s{s_ck}, s{s_ck}, 7")
    elif rot == 4:
        A(f"s_add_u32 s{s_ck}, s{s_g}, s{s_rb}\ns_and_b32 s{s_ck}, s{s_ck}, 3\ns_lshl_b32 s{s_ck}, s{s_ck}, 1")
    elif rot == 2:
        A(f"s_add_u32 s{s_ck}, s{s_g}, s{s_rb}\ns_and_b32 s{s_ck}, s{s_ck}, 1\ns_lshl_b32 s{s_ck}, s{s_ck}, 2")
    else:
        A(f"s_mov_b32 s{s_ck}, 0")
    A(f"""
    s_lshl_b32 s{s_xb}, s{s_a}, 10
    s_mul_i32 s{s_wb}, s{s_g}, 192
    s_lshl_b32 s{s_mx}, s{s_w}, 12
    s_mul_i32 s{s_mg}, s{s_w}, 3072
    s_add_u32 s{s_mu}, s{s_mg}, {WIMG+UPO}
    s_add_u32 s{s_mg}, s{s_mg}, {WIMG}
""")

    def dma_prep():
        return [f"s_lshl_b32 s{s_xo}, s{s_ck}, 7",
                f"s_add_u32 s{s_xo}, s{s_xo}, s{s_xb}",
                f"s_mul_i32 s{s_wo}, s{s_ck}, {64*2752}",
                f"s_add_u32 s{s_wo}, s{s_wo}, s{s_wb}",
                f"s_add_u32 s{s_ck}, s{s_ck}, 1",
                f"s_and_b32 s{s_ck}, s{s_ck}, 7"]

    def dma_list():
        L = []
        L.append(f"s_mov_b32 m0, s{s_mx}\ns_nop 0\nbuffer_load_dwordx4 v{vXd}, {sr(sX,4)}, s{s_xo} offen lds")
        for i in range(1, 4):
            L.append(f"buffer_load_dwordx4 v{vXd+i}, {sr(sX,4)}, s{s_xo} offen offset:{1024*i} lds")
        for srd, m in ((sWg, s_mg), (sWu, s_mu)):
            L.append(f"s_mov_b32 m0, s{m}\ns_nop 0\nbuffer_load_dwordx4 v{vWd}, {sr(srd,4)}, s{s_wo} offen lds")
            for i in range(1, 3):
                L.append(f"buffer_load_dwordx4 v{vWd+i}, {sr(srd,4)}, s{s_wo} offen offset:{1024*i} lds")
        return L

    def dma_advance(const=None):
        if const is not None:
            return [f"s_add_u32 s{m}, s{m}, {const}" for m in (s_mx, s_mg, s_mu)]
        return [f"s_cmp_eq_u32 s{s_dslot}, 2\ns_cselect_b32 s{s_dl}, {-2*SLOT & 0xffffffff}, s{s_slot}\ns_cselect_b32 s{s_dslot}, -1, s{s_dslot}",
                f"s_add_u32 s{s_dslot}, s{s_dslot}, 1"] + [f"s_add_u32 s{m}, s{m}, s{s_dl}" for m in (s_mx, s_mg, s_mu)]

    for x in dma_prep():
        A(x)
    A("s_waitcnt lgkmcnt(0)")
    stamp(A, opt, 1)
    for x in dma_list():
        A(x)
    for x in dma_advance(SLOT) + dma_prep() + dma_list() + dma_advance(SLOT):
        A(x)
    A(f"""
    s_mov_b32 s{s_dslot}, 2
    s_mov_b32 s{s_slot}, {SLOT}
    s_mov_b32 s{s_rslot}, 0
    s_mov_b32 s{sWs+2}, {WS_USED}
    s_mov_b32 s{sWs+3}, 0x20000
    v_and_b32 v{v_t0}, 31, v{v_lane}            ; r
    v_lshrrev_b32 v{v_t1}, 5, v{v_lane}         ; h
    v_bfe_u32 v{v_t2}, v{v_lane}, 1, 3          ; (r>>1)&7
    v_xor_b32 v{v_t2}, v{v_t2}, v{v_t1}
    v_lshlrev_b32 v{v_t2}, 4, v{v_t2}
    v_lshl_add_u32 v{v_t2}, v{v_t0}, 7, v{v_t2}
    s_lshl_b32 s{s_t0}, s{s_w}, 12
    s_lshl_b32 s{s_t1}, s{s_w}, 5
    s_add_u32 s{s_t0}, s{s_t0}, s{s_t1}
    v_xor_b32 v{vXr}, s{s_t0}, v{v_t2}
    v_xor_b32 v{vXr+1}, 32, v{vXr}
    v_xor_b32 v{vXr+2}, 64, v{vXr}
    v_xor_b32 v{vXr+3}, 96, v{vXr}
    v_bfe_u32 v{v_t0}, v{v_lane}, 2, 2
    v_lshl_add_u32 v{v_t0}, v{v_t1}, 3, v{v_t0}
    v_mul_u32_u24 v{v_t0}, 192, v{v_t0}
    v_and_b32 v{v_t2}, 3, v{v_lane}
    v_lshl_add_u32 v{v_t0}, v{v_t2}, 3, v{v_t0}
    v_bfe_u32 v{v_t2}, v{v_lane}, 4, 1
    v_mul_u32_u24 v{v_t2}, {UPO}, v{v_t2}
    v_add_u32 v{v_t0}, v{v_t0}, v{v_t2}
""")
    for s in range(4):
        A(f"s_xor_b32 s{s_t0}, s{s_w}, {s}\ns_mul_i32 s{s_t0}, s{s_t0}, 3072\ns_add_u32 s{s_t0}, s{s_t0}, {WIMG}")
        A(f"v_add_u32 v{vWr+s}, s{s_t0}, v{v_t0}")
    for r in list(range(vS, vS + 10)) + list(range(acc, acc + 96)):
        A(f"v_mov_b32 v{r}, 0")

    def rd_x(s, buf):
        return f"ds_read_b128 {vr(vXf+4*buf,4)}, v{vXr+s}"

    def rd_w(s, buf, j):
        return [f"ds_read_b64_tr_b16 {vr(vWf+24*buf+4*j+2*p,2)}, v{vWr+s} offset:{768*p+32*j}" for p in range(2)]

    def stat_ops(buf):
        L = []
        for k in range(4):
            L.append(f"v_dot2c_f32_bf16 v{vS+(k&1)}, s{s_ones}, v{vXf+4*buf+k}")
            L.append(f"v_dot2c_f32_bf16 v{vQ+(k&1)}, v{vXf+4*buf+k}, v{vXf+4*buf+k}")
        return L

    def cs_ops(buf, j):
        return [f"v_dot2c_f32_bf16 v{vC+j}, s{s_ones}, v{vWf+24*buf+4*j+k}" for k in range(4)]

    CS_UNITS = {0: (0, 1), 1: (2, 3), 2: (4,), 3: (5,)}

    def kstep(s, buf, nxt, waits=True, extra=None):
        extra = list(extra or [])
        st = stat_ops(buf)
        cs = {j: cs_ops(buf, j) for j in CS_UNITS[s]}
        for j in range(6):
            if waits and j % 2 == 0:
                n = (8 if j == 0 else 9) if nxt is not None else (8 - 2 * j)
                A(f"s_waitcnt lgkmcnt({n})")
            A(f"v_mfma_f32_32x32x16_bf16 {vr(acc+16*j,16)}, {vr(vWf+24*buf+4*j,4)}, {vr(vXf+4*buf,4)}, {vr(acc+16*j,16)}")
            if nxt is not None:
                if j == 0:
                    A(rd_x(nxt, buf ^ 1))
                for x in rd_w(nxt, buf ^ 1, j):
                    A(x)
            for x in cs.get(j, []):
                A(x)
            if j not in cs:
                for _ in range(2):
                    if st:
                        A(st.pop(0))
            k = (len(extra) + (5 - j)) // (6 - j)
            for _ in range(k):
                A(extra.pop(0))
        for x in st:
            A(x)

    def rd_advance():
        L = [f"s_cmp_eq_u32 s{s_rslot}, 2\ns_cselect_b32 s{s_t0}, {-2*SLOT & 0xffffffff}, s{s_slot}\ns_cselect_b32 s{s_rslot}, -1, s{s_rslot}\ns_add_u32 s{s_rslot}, s{s_rslot}, 1"]
        L += [f"v_add_u32 v{r}, s{s_t0}, v{r}" for r in list(range(vXr, vXr + 4)) + list(range(vWr, vWr + 4))]
        return L

    A(f"s_mov_b32 s{s_p}, 0")
    A("s_waitcnt vmcnt(10)")
    A("s_barrier")
    stamp(A, opt, 2)
    A(rd_x(0, 0))
    for j in range(6):
        for x in rd_w(0, 0, j):
            A(x)
    A("s_branch K1_B")
    A("K1_A:")
    A("s_waitcnt vmcnt(10) lgkmcnt(0)")
    A("s_barrier")
    for x in rd_advance():
        A(x)
    kstep(3, 1, 0, waits=False)
    A("K1_B:")
    dl = dma_list()
    kstep(0, 0, 1, extra=dma_prep() + dl[0:3])
    kstep(1, 1, 2, extra=dl[3:7])
    kstep(2, 0, 3, extra=dl[7:10] + dma_advance())
    A(f"""
    s_add_u32 s{s_p}, s{s_p}, 1
    s_cmp_eq_u32 s{s_p}, 6
    s_cselect_b32 s{sX+2}, 0, s{sX+2}
    s_cselect_b32 s{sWg+2}, 0, s{sWg+2}
    s_cselect_b32 s{sWu+2}, 0, s{sWu+2}
    s_cmp_lt_u32 s{s_p}, 7
    s_cbranch_scc1 K1_A
""")
    A("s_waitcnt vmcnt(10) lgkmcnt(0)")
    A("s_barrier")
    stamp(A, opt, 3)
    for x in rd_advance():
        A(x)
    kstep(3, 1, 0, waits=False)
    kstep(0, 0, 1)
    kstep(1, 1, 2)
    kstep(2, 0, 3)
    kstep(3, 1, None)
    stamp(A, opt, 4)
    A(f"""
    v_lshlrev_b32 v{v_t0}, 4, v{v_lane}
    s_lshl_b32 s{s_t0}, s{s_w}, 2
    s_add_u32 s{s_t0}, s{s_t0}, {EXC}
    v_add_u32 v{v_t1}, s{s_t0}, v{v_t0}
    v_add_u32 v{v_t2}, {EXC}, v{v_t0}
""")
    for j in range(6):
        A(f"ds_write_b32 v{v_t1}, v{vC+j} offset:{1024*j}")
    vmu, vk1, vk3, vci, vrs = vXf, 192, 194, 196, 198
    A(f"v_mov_b32 v{vmu+1}, 0\nv_mov_b32 v{vmu+2}, 0\nv_mov_b32 v{vmu+3}, 0")
    A("s_waitcnt lgkmcnt(0)")
    A("s_barrier")
    vP = 200
    for j in range(6):
        A(f"ds_read_b128 {vr(vP+4*j,4)}, v{v_t2} offset:{1024*j}")
    stats_finalize(A, vS, vQ, vmu, vk1, vk3, vci, vrs, v_t3, v_t1)
    A(f"""
    s_mul_i32 s{s_ho}, s{s_a}, 86
    s_mul_i32 s{s_t0}, s{s_g}, 6
    s_add_u32 s{s_ho}, s{s_ho}, s{s_t0}
    s_lshl_b32 s{s_ho}, s{s_ho}, 10
    s_add_u32 s{s_t1}, s{s_ho}, 4096
    s_waitcnt lgkmcnt(0)
""")
    for j in range(6):
        p = vP + 4 * j
        A(f"""
    v_add_f32 v{p}, v{p}, v{p+1}
    v_add_f32 v{p+2}, v{p+2}, v{p+3}
    v_add_f32 v{p}, v{p}, v{p+2}
    v_cvt_pk_bf16_f32 v{p+1}, v{p}, v{p}
    v_and_b32 v{p+1}, 0xffff0000, v{p+1}
    v_sub_f32 v{p+1}, v{p}, v{p+1}
    v_cvt_pk_bf16_f32 v{vWf+4*j}, v{p}, v{p+1}
""")
    A("s_nop 1")
    for j in range(6):
        A(f"v_mfma_f32_32x32x16_bf16 {vr(acc+16*j,16)}, {vr(vWf+4*j,4)}, {vr(vmu,4)}, {vr(acc+16*j,16)}")
    A("s_nop 7")
    stamp(A, opt, 5)
    for j in range(6):
        tmp = vWf + 24 + 8 * (j & 1)
        out = vP + 4 * j
        for x in gelu_unit(acc + 16 * j, tmp, out, vk1, vk3, vci):
            A(x)
        so = s_ho if j < 4 else s_t1
        A(f"buffer_store_dwordx4 {vr(out,4)}, v{v_t0}, {sr(sWs,4)}, s{so} offen offset:{1024*(j&3)} {st_aux}")
    if opt.get('stamps'):
        stamp(A, opt, 6)
        A("s_waitcnt vmcnt(0)")
        stamp(A, opt, 7)
        emit_stamp_store(A, 8, sWs, 0x1000000, s_w, v_lane)
    A("s_endpgm")
    return lds


def gen_dft(A, opt, st_aux):
    STG = 65536
    HD = 32768
    WL = 131072
    lds = WL + 32768
    s_par, s_xo, s_ho, s_mx, s_mh = 40, 41, 42, 43, 44
    s_sig = 46
    s_wo, s_mw = 48, 49
    s_neg, s_so = 50, 51
    vHd = 12
    vRx = 16
    vRb = 20
    vS, vQ = 24, 26
    vWl = 28
    vCs = 30
    vXb = 32
    vF = 48
    vT = 56
    vB = 64
    acc = 128

    A("K1_dft:")
    A(f"""
    s_sub_u32 s{s_par}, s{s_g}, 14
    s_mov_b32 s{sHr+2}, {512*1024}
    s_mov_b32 s{sHr+3}, 0x20000
    s_mov_b32 s{sHi+2}, {512*1024}
    s_mov_b32 s{sHi+3}, 0x20000
    s_lshl_b32 s{s_t0}, s{s_w}, 6
    s_add_u32 s{s_t0}, s{s_t0}, s{s_par}
    v_lshlrev_b32 v{v_t2}, 1, v{v_t0}
    v_add_u32 v{v_t2}, s{s_t0}, v{v_t2}
    v_lshl_add_u32 v{vHd+2}, v{v_t2}, 10, v{v_t1}
    v_cmp_eq_u32 vcc, 0, v{v_t2}
    v_xor_b32 v{vHd+1}, 64, v{vHd+2}
    v_add_u32 v{v_t3}, {256*1024}, v{vHd+2}
    v_cndmask_b32 v{vHd}, v{vHd+2}, v{v_t3}, vcc
    v_add_u32 v{vHd+3}, {45*1024}, v{vHd+1}
    v_add_u32 v{vHd+1}, {15*1024}, v{vHd+1}
    v_add_u32 v{vHd+2}, {30*1024}, v{vHd+2}
    s_lshl_b32 s{s_xo}, s{s_a}, 10
    s_mov_b32 s{s_ho}, 0
    s_lshl_b32 s{s_mx}, s{s_w}, 12
    s_lshl_b32 s{s_mh}, s{s_w}, 13
    s_add_u32 s{s_mh}, s{s_mh}, {HD}
""")

    def dma_x(s):
        L = []
        slot = (s & 1) * STG
        for half in range(2):
            L.append(f"s_add_u32 m0, s{s_mx}, {slot+half*16384}\ns_add_u32 s{s_t2}, s{s_xo}, {128*(s+4*half)}\n"
                     f"buffer_load_dwordx4 v{vXd}, {sr(sX,4)}, s{s_t2} offen lds")
            for i in range(1, 4):
                L.append(f"buffer_load_dwordx4 v{vXd+i}, {sr(sX,4)}, s{s_t2} offen offset:{1024*i} lds")
        return L

    def dma_h(s):
        L = []
        slot = (s & 1) * STG
        for mat, srd in enumerate((sHr, sHi)):
            L.append(f"s_add_u32 m0, s{s_mh}, {slot+mat*4096}\ns_mov_b32 s{s_ho}, {128*s}\n"
                     f"buffer_load_dwordx4 v{vHd}, {sr(srd,4)}, s{s_ho} offen lds")
            for i in range(1, 4):
                L.append(f"buffer_load_dwordx4 v{vHd+i}, {sr(srd,4)}, s{s_ho} offen offset:{1024*i} lds")
        return L

    def dma_w(i):
        L = []
        for mat, srd in enumerate((sWg, sWu)):
            L.append(f"s_add_u32 m0, s{s_mw}, {mat*16384+1024*i}\ns_add_u32 s{s_t2}, s{s_wo}, {32*2752*i}\n"
                     f"buffer_load_dwordx4 v{vWl+mat}, {sr(srd,4)}, s{s_t2} offen lds")
        return L

    vm = []
    A("s_waitcnt lgkmcnt(0)")
    stamp(A, opt, 1)
    for x in dma_x(0): A(x)
    vm += ['x0'] * 8
    for x in dma_h(0): A(x)
    vm += ['h0'] * 8
    A(f"""
    v_lshrrev_b32 v{v_t0}, 1, v{v_lane}
    v_and_b32 v{v_t1}, 1, v{v_lane}
    v_lshlrev_b32 v{v_t1}, 4, v{v_t1}
    v_mul_u32_u24 v{vWl}, 2752, v{v_t0}
    v_add_u32 v{vWl}, v{vWl}, v{v_t1}
    v_xor_b32 v{v_t0}, 4, v{v_t0}
    v_mul_u32_u24 v{vWl+1}, 2752, v{v_t0}
    v_add_u32 v{vWl+1}, v{vWl+1}, v{v_t1}
    s_mul_i32 s{s_wo}, s{s_w}, {128*2752}
    s_lshl_b32 s{s_t0}, s{s_par}, 5
    s_add_u32 s{s_wo}, s{s_wo}, s{s_t0}
    s_add_u32 s{s_wo}, s{s_wo}, 2688
    s_lshl_b32 s{s_mw}, s{s_w}, 12
    s_add_u32 s{s_mw}, s{s_mw}, {WL}
""")
    for x in dma_x(1): A(x)
    vm += ['x1'] * 8
    for x in dma_h(1): A(x)
    vm += ['h1'] * 8
    for x in dma_w(0): A(x)
    vm += ['w0'] * 2
    A(f"""
    s_mov_b32 s{sWs+2}, {WS_USED}
    s_mov_b32 s{sWs+3}, 0x20000
    s_cmp_eq_u32 s{s_par}, 0
    s_cselect_b32 s{s_sig}, 1.0, -1.0
    s_cselect_b32 s{s_sig+1}, 1.0, -1.0
    s_mov_b32 s{s_neg}, 0x80008000
    v_and_b32 v{v_t0}, 31, v{v_lane}            ; r
    v_lshrrev_b32 v{v_t1}, 5, v{v_lane}         ; h
    v_bfe_u32 v{v_t2}, v{v_lane}, 1, 3
    v_xor_b32 v{v_t2}, v{v_t2}, v{v_t1}
    v_lshlrev_b32 v{v_t2}, 4, v{v_t2}
    v_lshl_add_u32 v{vRb}, v{v_t0}, 7, v{v_t2}
    v_xor_b32 v{vRb+1}, 32, v{vRb}
    v_xor_b32 v{vRb+2}, 64, v{vRb}
    v_xor_b32 v{vRb+3}, 96, v{vRb}
    v_add_u32 v{vRx}, s{s_mx}, v{vRb}
    v_add_u32 v{vRx+1}, s{s_mx}, v{vRb+1}
    v_add_u32 v{vRx+2}, s{s_mx}, v{vRb+2}
    v_add_u32 v{vRx+3}, s{s_mx}, v{vRb+3}
""")
    for r in range(vS, vS + 4):
        A(f"v_mov_b32 v{r}, 0")
    A(f"v_mov_b32 v{vCs}, 0\nv_mov_b32 v{vCs+1}, 0")

    def wait_tag(tag):
        last = max(k for k, t in enumerate(vm) if t == tag)
        return len(vm) - 1 - last

    def rd_x(n):
        ks, b = n & 3, n & 1
        return [f"ds_read_b128 {vr(vXb+8*b,4)}, v{vRx+ks}",
                f"ds_read_b128 {vr(vXb+8*b+4,4)}, v{vRx+ks} offset:16384",
                f"ds_read_b128 {ar(4*n,4)}, v{vRx+ks}",
                f"ds_read_b128 {ar(64+4*n,4)}, v{vRx+ks} offset:16384"]

    def rd_b(n):
        ks, b = n & 3, n & 1
        return [f"ds_read_b128 {vr(vB+32*b+4*j,4)}, v{vRb+ks} offset:{HD+4096*j}" for j in range(8)]

    def fold(n):
        b = n & 1
        lo, hi, out = vXb + 8 * b, vXb + 8 * b + 4, vF + 4 * b
        L = []
        for k in range(4):
            t = vT + 4 * (k & 1)
            L += [f"v_lshlrev_b32 v{t}, 16, v{lo+k}",
                  f"v_and_b32 v{t+1}, 0xffff0000, v{lo+k}",
                  f"v_lshlrev_b32 v{t+2}, 16, v{hi+k}",
                  f"v_and_b32 v{t+3}, 0xffff0000, v{hi+k}",
                  f"v_dot2c_f32_bf16 v{vS}, s{s_ones}, v{lo+k}",
                  f"v_dot2c_f32_bf16 v{vQ}, v{lo+k}, v{lo+k}",
                  f"v_pk_fma_f32 {vr(t,2)}, {vr(t+2,2)}, {sr(s_sig,2)}, {vr(t,2)}",
                  f"v_dot2c_f32_bf16 v{vS+1}, s{s_ones}, v{hi+k}",
                  f"v_dot2c_f32_bf16 v{vQ+1}, v{hi+k}, v{hi+k}",
                  f"v_cvt_pk_bf16_f32 v{out+k}, v{t}, v{t+1}"]
        return L

    def toggle(regs):
        return [f"v_xor_b32 v{r}, {STG}, v{r}" for r in regs]

    A(f"s_waitcnt vmcnt({wait_tag('x0')})")
    for x in rd_x(0) + rd_x(1): A(x)
    A("s_waitcnt lgkmcnt(4)")
    for x in fold(0): A(x)
    A(f"s_waitcnt vmcnt({wait_tag('h0')})")
    A("s_barrier")
    stamp(A, opt, 2)
    for x in rd_b(0): A(x)
    vCf = vXb
    for n in range(16):
        s, ks, b = n >> 2, n & 3, n & 1
        pre = []
        fill = []
        if ks == 3 and s < 3:
            A(f"s_waitcnt vmcnt({wait_tag(f'h{s+1}')}) lgkmcnt(0)")
            A("s_barrier")
            for x in toggle(range(vRb, vRb + 4)): A(x)
        else:
            A("s_waitcnt lgkmcnt(0)")
        if ks == 2 and s < 3:
            A(f"s_waitcnt vmcnt({wait_tag(f'x{s+1}')})")
            for x in toggle(range(vRx, vRx + 4)): A(x)
        if n + 1 < 16:
            fill += rd_b(n + 1)
        fl = fold(n + 1) if n + 1 < 16 else []
        if n + 2 < 16:
            fill += rd_x(n + 2)
        dm = []
        if ks == 3 and s + 2 < 4:
            dm = dma_x(s + 2) + dma_h(s + 2) + dma_w(s + 1)
            vm += [f'x{s+2}'] * 8 + [f'h{s+2}'] * 8 + [f'w{s+1}'] * 2
            if s + 2 == 3:
                dm += dma_w(3)
                vm += ['w3'] * 2
        if n == 15:
            dm = [f"v_lshlrev_b32 v{v_t2}, 14, v{v_t0}", f"v_lshl_add_u32 v{v_t2}, v{v_t1}, 3, v{v_t2}"]
            for mat, srd in enumerate((sHr, sHi)):
                for m in range(2):
                    for p in range(2):
                        dm.append(f"buffer_load_dwordx2 {vr(vCf+8*mat+4*m+2*p,2)}, v{v_t2}, {sr(srd,4)}, 0 offen offset:{32*m+16*p}")
            vm += ['c'] * 8
        merged = []
        rest = fl + dm
        step = max(1, len(rest) // max(1, len(fill))) if fill else 0
        ri = 0
        for x in fill:
            merged.append(x)
            merged += rest[ri:ri + step]; ri += step
        merged += rest[ri:]
        mf = []
        for j in range(8):
            c = '0' if n == 0 else vr(acc + 16 * j, 16)
            mf.append(f"v_mfma_f32_32x32x16_bf16 {vr(acc+16*j,16)}, {vr(vF+4*b,4)}, {vr(vB+32*b+4*j,4)}, {c}")
        A("s_nop 0")
        interleave(A, mf, merged)
    stamp(A, opt, 3)
    vmu, vk1, vk3, vci, vrs = vF, 6, 12, 14, vT
    A(f"v_mov_b32 v{vmu+1}, 0\nv_mov_b32 v{vmu+2}, 0\nv_mov_b32 v{vmu+3}, 0")
    stats_finalize(A, vS, vQ, vmu, vk1, vk3, vci, vrs, v_t3, v_t2)
    RS = STG
    vRs = vB
    A(f"""
    v_lshlrev_b32 v{v_t2}, 2, v{v_lane}
    v_add_u32 v{v_t2}, s{s_mx}, v{v_t2}
    v_add_u32 v{v_t2}, {RS}, v{v_t2}
    ds_write_b32 v{v_t2}, v{vrs}
    v_lshlrev_b32 v{v_t3}, 4, v{v_t1}
    v_add_u32 v{v_t3}, s{s_mx}, v{v_t3}
    v_add_u32 v{v_t3}, {RS}, v{v_t3}
    s_waitcnt lgkmcnt(0)
""")
    for q in range(4):
        A(f"ds_read_b128 {vr(vRs+4*q,4)}, v{v_t3} offset:{32*q}")
    vEx = vRx
    A(f"""
    v_lshlrev_b32 v{vEx}, 4, v{v_t0}
    v_lshl_add_u32 v{vEx}, v{v_t1}, 11, v{vEx}
    s_lshl_b32 s{s_t0}, s{s_w}, 2
    v_add_u32 v{vEx}, s{s_t0}, v{vEx}
    s_waitcnt vmcnt(0)
""")
    vNC = vB + 16
    for k in range(8):
        A(f"v_xor_b32 v{vNC+k}, s{s_neg}, v{vCf+k}")
        A(f"v_xor_b32 v{vCf+8+k}, s{s_neg}, v{vCf+8+k}")
    vNS = vCf + 8
    A("s_waitcnt lgkmcnt(0)")
    vAb = vB + 32
    for T in range(4):
        c, sn = acc + 32 * T, acc + 32 * T + 16
        fa = vAb + 16 * (T & 1)
        fb = fa + 8
        for k in range(0, 16, 2):
            A(f"v_pk_mul_f32 {vr(c+k,2)}, {vr(c+k,2)}, {vr(vRs+k,2)}")
            A(f"v_pk_mul_f32 {vr(sn+k,2)}, {vr(sn+k,2)}, {vr(vRs+k,2)}")
        for k in range(8):
            A(f"v_cvt_pk_bf16_f32 v{fa+k}, v{c+2*k}, v{c+2*k+1}")
            A(f"v_cvt_pk_bf16_f32 v{fb+k}, v{sn+2*k}, v{sn+2*k+1}")
        A("s_nop 1")
        A(f"v_mfma_f32_32x32x16_bf16 {vr(c,16)}, {vr(vCf,4)}, {vr(fa,4)}, 0")
        A(f"v_mfma_f32_32x32x16_bf16 {vr(sn,16)}, {vr(vNC,4)}, {vr(fb,4)}, 0")
        A(f"v_mfma_f32_32x32x16_bf16 {vr(c,16)}, {vr(vCf+4,4)}, {vr(fa+4,4)}, {vr(c,16)}")
        A(f"v_mfma_f32_32x32x16_bf16 {vr(sn,16)}, {vr(vNC+4,4)}, {vr(fb+4,4)}, {vr(sn,16)}")
        A(f"v_mfma_f32_32x32x16_bf16 {vr(c,16)}, {vr(vNS,4)}, {vr(fb,4)}, {vr(c,16)}")
        A(f"v_mfma_f32_32x32x16_bf16 {vr(sn,16)}, {vr(vNS,4)}, {vr(fa,4)}, {vr(sn,16)}")
        A(f"v_mfma_f32_32x32x16_bf16 {vr(c,16)}, {vr(vNS+4,4)}, {vr(fb+4,4)}, {vr(c,16)}")
        A(f"v_mfma_f32_32x32x16_bf16 {vr(sn,16)}, {vr(vNS+4,4)}, {vr(fa+4,4)}, {vr(sn,16)}")

        def pub(T):
            c, sn = acc + 32 * T, acc + 32 * T + 16
            for r in range(16):
                A(f"v_cvt_pk_bf16_f32 v{c+r}, v{c+r}, v{sn+r}")
                A(f"ds_write_b32 v{vEx}, v{c+r} offset:{T*16384+(8*(r>>2)+(r&3))*512}")
        if T >= 1:
            pub(T - 1)
    A("s_nop 7\ns_nop 3")
    pub(3)
    stamp(A, opt, 4)
    A(f"""
    v_lshlrev_b32 v{v_t2}, 4, v{v_lane}
    s_lshl_b32 s{s_t0}, s{s_w}, 14
    v_add_u32 v{v_t3}, s{s_t0}, v{v_t2}
    v_lshlrev_b32 v{vEx}, 4, v{v_t0}
    v_lshl_add_u32 v{vEx}, v{v_t1}, 16, v{vEx}
    s_lshl_b32 s{s_so}, s{s_par}, 15
    s_lshl_b32 s{s_t0}, s{s_w}, 13
    s_add_u32 s{s_so}, s{s_so}, s{s_t0}
    s_lshl_b32 s{s_t0}, s{s_rb}, 9
    s_add_u32 s{s_so}, s{s_so}, s{s_t0}
    s_add_u32 s{s_so}, s{s_so}, {T_OFF}
    s_waitcnt lgkmcnt(0)
    s_barrier
""")
    for q in range(16):
        A(f"ds_read_b128 {vr(acc+4*q,4)}, v{v_t3} offset:{1024*q}")
        if q == 7:
            pass
    vWr = vRb
    A(f"""
    v_bfe_u32 v{v_t0}, v{v_lane}, 2, 2
    v_lshl_add_u32 v{v_t0}, v{v_t1}, 3, v{v_t0}
    v_lshlrev_b32 v{v_t0}, 5, v{v_t0}
    v_and_b32 v{v_t3}, 3, v{v_lane}
    v_lshl_add_u32 v{v_t0}, v{v_t3}, 3, v{v_t0}
    v_bfe_u32 v{v_t3}, v{v_lane}, 4, 1
    v_mul_u32_u24 v{v_t3}, {16384+128}, v{v_t3}
    v_add_u32 v{v_t0}, v{v_t0}, v{v_t3}
    v_add_u32 v{vWr}, {WL}, v{v_t0}
    v_xor_b32 v{vWr+1}, 128, v{vWr}
""")
    for q in range(16):
        A(f"s_waitcnt lgkmcnt({min(15, 15-q)})")
        A(f"buffer_store_dwordx4 {vr(acc+4*q,4)}, v{vEx}, {sr(sWs,4)}, s{s_so} offen {st_aux}")
        if q < 15:
            A(f"s_add_u32 s{s_so}, s{s_so}, 131072")
    stamp(A, opt, 5)
    accL = acc + 64
    vWf = vB
    NB = 4

    def rd_w(kk):
        return [f"ds_read_b64_tr_b16 {vr(vWf+4*(kk%NB)+2*p,2)}, v{vWr+p} offset:{512*kk}" for p in range(2)]
    for kk in range(NB - 1):
        for x in rd_w(kk): A(x)
    for kk in range(32):
        left = min(31 - kk, NB - 2)
        A(f"s_waitcnt lgkmcnt({2*left})")
        c = '0' if kk == 0 else vr(accL, 16)
        A(f"v_mfma_f32_32x32x16_bf16 {vr(accL,16)}, {vr(vWf+4*(kk%NB),4)}, {ar(4*kk,4)}, {c}")
        if kk + NB - 1 < 32:
            for x in rd_w(kk + NB - 1): A(x)
        for k in range(4):
            A(f"v_dot2c_f32_bf16 v{vCs+(k&1)}, s{s_ones}, v{vWf+4*(kk%NB)+k}")
    A(f"""
    s_nop 2
    v_add_f32 v{vCs}, v{vCs}, v{vCs+1}
    v_cvt_pk_bf16_f32 v{vCs+1}, v{vCs}, v{vCs}
    v_and_b32 v{vCs+1}, 0xffff0000, v{vCs+1}
    v_sub_f32 v{vCs+1}, v{vCs}, v{vCs+1}
    v_cvt_pk_bf16_f32 v{vWf}, v{vCs}, v{vCs+1}
    s_mul_i32 s{s_so}, s{s_a}, 86
    s_add_u32 s{s_so}, s{s_so}, s{s_par}
    v_mfma_f32_32x32x16_bf16 {vr(accL,16)}, {vr(vWf,4)}, {vr(vmu,4)}, {vr(accL,16)}
    s_add_u32 s{s_so}, s{s_so}, 84
    s_lshl_b32 s{s_so}, s{s_so}, 10
    s_nop 9
""")
    for x in gelu_unit(accL, vWf + 8, vWf + 4, vk1, vk3, vci):
        A(x)
    A(f"buffer_store_dwordx4 {vr(vWf+4,4)}, v{v_t2}, {sr(sWs,4)}, s{s_so} offen {st_aux}")
    if opt.get('stamps'):
        stamp(A, opt, 6)
        A("s_waitcnt vmcnt(0)")
        stamp(A, opt, 7)
        emit_stamp_store(A, 8, sWs, 0x1000000, s_w, v_lane)
    return lds
```

```python
import sys

NAME = 'recurrent_scan__spectral_fnet__geglu_ffn__prompt'
T_OFF = 0x600000
WS_USED = 0x800000
LOG2E = 1.4426950408889634


def f2u(x):
    import struct
    return struct.unpack('<I', struct.pack('<f', x))[0]


class Asm:
    def __init__(self):
        self.L = []

    def __call__(self, s):
        for line in s.split('\n'):
            line = line.strip()
            if line:
                self.L.append(('' if line.endswith(':') else '    ') + line)

    def text(self):
        return '\n'.join(self.L) + '\n'


def vr(a, n=1):
    return f"v{a}" if n == 1 else f"v[{a}:{a+n-1}]"


def ar(a, n=1):
    return f"a{a}" if n == 1 else f"a[{a}:{a+n-1}]"


def sr(a, n=1):
    return f"s{a}" if n == 1 else f"s[{a}:{a+n-1}]"


def kdesc(name, vgpr, sgpr, accum):
    return f""".amdhsa_kernel {name}
  .amdhsa_next_free_vgpr {vgpr}
  .amdhsa_next_free_sgpr {sgpr}
  .amdhsa_accum_offset {accum}
  .amdhsa_group_segment_fixed_size 0
  .amdhsa_kernarg_size 96
  .amdhsa_user_sgpr_count 2
  .amdhsa_user_sgpr_kernarg_segment_ptr 1
  .amdhsa_system_sgpr_workgroup_id_x 1
  .amdhsa_float_denorm_mode_32 3
.end_amdhsa_kernel
"""


def stamp(A, opt, idx):
    if opt.get('stamps'):
        A(f"s_memtime s[{70+2*idx}:{71+2*idx}]")


def gen_k2(A, opt):
    D = opt.get('k2_dist', 3)
    R = D + 1
    NST = 11
    sH, sWd, sRe, sIm, sX, sOut = 8, 12, 16, 20, 24, 28
    s_w, s_j, s_i, s_u, s_cb = 32, 33, 34, 35, 36
    s_hoff, s_woff, s_m0, s_t0, s_t1, s_sign = 37, 38, 39, 40, 41, 42
    s_toff, s_moff, s_xoff = 43, 44, 45
    s_p0, s_p1 = 46, 47
    s_zm = 48
    s_c = 50
    v_lane, v_t0, v_t1, v_t2, v_t3 = 1, 2, 3, 4, 5
    v_h = 6
    v_w = 8
    v_r = 12
    v_T = 14
    v_M = 16
    v_x = 17
    v_ex = 18
    accO = [32, 48]
    accY = [64, 80]
    vTf = 96
    vMr = 128
    vMf = 144
    vX = 160
    vWf = 168
    vHf = 184
    assert vHf + 16 * R <= 256
    EXO = R * 16384
    EXY = EXO + 16384
    lds = EXY + 16384

    A(f"""
k2_kernel:
    s_cmp_ge_u32 s2, 256
    s_cbranch_scc1 K2_end
    s_load_dwordx2 {sr(sH,2)}, s[0:1], 88
    s_load_dwordx2 {sr(sWd,2)}, s[0:1], 64
    s_load_dwordx2 {sr(sRe,2)}, s[0:1], 8
    s_load_dwordx2 {sr(sIm,2)}, s[0:1], 16
    s_load_dwordx2 {sr(sX,2)}, s[0:1], 0
    s_load_dwordx2 {sr(sOut,2)}, s[0:1], 72
""")
    if opt.get('stamps'):
        A("s_memrealtime s[66:67]")
    stamp(A, opt, 0)
    A(f"""
    v_lshrrev_b32 v{v_t0}, 6, v0
    v_and_b32 v{v_lane}, 63, v0
    s_mov_b32 s{sH+2}, {WS_USED}
    s_mov_b32 s{sH+3}, 0x20000
    v_readfirstlane_b32 s{s_w}, v{v_t0}
    s_mov_b32 s{sWd+2}, {1376*1024}
    s_mov_b32 s{sWd+3}, 0x20000
    s_lshr_b32 s{s_t0}, s2, 3
    s_and_b32 s{s_u}, s{s_t0}, 7
    s_lshr_b32 s{s_cb}, s{s_t0}, 3
    s_and_b32 s{s_t0}, s2, 6
    s_lshl_b32 s{s_t0}, s{s_t0}, 2
    s_add_u32 s{s_u}, s{s_u}, s{s_t0}
    s_and_b32 s{s_t0}, s2, 1
    s_lshl_b32 s{s_t0}, s{s_t0}, 2
    s_add_u32 s{s_cb}, s{s_cb}, s{s_t0}
    s_and_b32 s{s_j}, s{s_w}, 1
    s_lshr_b32 s{s_i}, s{s_w}, 1
    ; h
    v_lshlrev_b32 v{v_h}, 4, v{v_lane}
    s_lshl_b32 s{s_t1}, s{s_j}, 5
    s_add_u32 s{s_t1}, s{s_t1}, s{s_u}          ; a = u + 32 j
    s_mul_i32 s{s_hoff}, s{s_t1}, {86*1024}
    s_mul_i32 s{s_t0}, s{s_i}, {43*1024}
    s_add_u32 s{s_hoff}, s{s_hoff}, s{s_t0}
    v_lshrrev_b32 v{v_t0}, 3, v{v_lane}
    v_and_b32 v{v_t1}, 7, v{v_lane}
    v_lshrrev_b32 v{v_t2}, 2, v{v_lane}
    v_and_b32 v{v_t2}, 4, v{v_t2}
    v_xor_b32 v{v_t1}, v{v_t1}, v{v_t2}
    v_lshlrev_b32 v{v_t1}, 4, v{v_t1}
    v_lshl_add_u32 v{v_w}, v{v_t0}, 10, v{v_t1}
    v_add_u32 v{v_w+1}, {8192-1024}, v{v_w}
    v_add_u32 v{v_w+2}, {2*(8192-1024)}, v{v_w}
    v_add_u32 v{v_w+3}, {3*(8192-1024)}, v{v_w}
    s_mul_i32 s{s_woff}, s{s_i}, {688*1024}
    s_lshl_b32 s{s_t0}, s{s_j}, 15
    s_add_u32 s{s_woff}, s{s_woff}, s{s_t0}
    s_lshl_b32 s{s_t0}, s{s_cb}, 7
    s_add_u32 s{s_woff}, s{s_woff}, s{s_t0}
    s_lshl_b32 s{s_m0}, s{s_i}, 13
    s_lshl_b32 s{s_t0}, s{s_j}, 12
    s_add_u32 s{s_m0}, s{s_m0}, s{s_t0}
""")

    def issue_stage(s):
        n = 4 if s < NST - 1 else 3
        slot = (s % R) * 16384
        if s == NST - 1:
            A(f"s_lshl_b32 s{s_t0}, s{s_j}, 13")
            A(f"s_sub_u32 s{s_woff}, s{s_woff}, s{s_t0}")
            A(f"s_lshl_b32 s{s_t0}, s{s_j}, 10")
            A(f"s_sub_u32 s{s_m0}, s{s_m0}, s{s_t0}")
        A(f"s_add_u32 m0, s{s_m0}, {slot}")
        hb = vHf + 16 * (s % R)
        A(f"buffer_load_dwordx4 {vr(hb,4)}, v{v_h}, {sr(sH,4)}, s{s_hoff} offen")
        for q in range(n):
            off = f" offset:{1024*q}" if q else ""
            A(f"buffer_load_dwordx4 v{v_w+q}, {sr(sWd,4)}, s{s_woff} offen{off} lds")
            if q + 1 < n:
                A(f"buffer_load_dwordx4 {vr(hb+4*(q+1),4)}, v{v_h}, {sr(sH,4)}, s{s_hoff} offen offset:{1024*(q+1)}")
        if s < NST - 1:
            A(f"s_add_u32 s{s_hoff}, s{s_hoff}, 4096")
            A(f"s_add_u32 s{s_woff}, s{s_woff}, 65536")
        return 2 * n

    A("s_waitcnt lgkmcnt(0)")
    stamp(A, opt, 1)
    vm = []
    vm += ['s0'] * issue_stage(0)
    A(f"""
    s_mov_b32 s{sRe+2}, {2048*4096}
    s_mov_b32 s{sRe+3}, 0x20000
    s_mov_b32 s{sIm+2}, {2048*4096}
    s_mov_b32 s{sIm+3}, 0x20000
    s_mov_b32 s{sX+2}, {2048*1024}
    s_mov_b32 s{sX+3}, 0x20000
    s_mov_b32 s{sOut+2}, {2048*1024}
    s_mov_b32 s{sOut+3}, 0x20000
    ; T voffsets
    v_and_b32 v{v_t0}, 31, v{v_lane}            ; n
    v_lshrrev_b32 v{v_t1}, 5, v{v_lane}         ; h
    s_lshl_b32 s{s_t0}, s{s_cb}, 1
    s_add_u32 s{s_t0}, s{s_t0}, s{s_i}
    s_lshl_b32 s{s_t0}, s{s_t0}, 5
    v_add_u32 v{v_ex}, s{s_t0}, v{v_t0}
    s_cmp_ge_u32 s{s_cb}, 4
    s_cselect_b32 s{s_sign}, 0x80008000, 0
    s_cselect_b32 s{s_p0}, -1, 0                ; mirror: e' = 512 - e = (e ^ -1) + 513
    s_cselect_b32 s{s_p1}, 513, 0
""")
    for ct in range(2):
        if ct == 1:
            A(f"v_xor_b32 v{v_ex}, 32, v{v_ex}")
        A(f"""
    v_xor_b32 v{v_t2}, s{s_p0}, v{v_ex}
    v_add_u32 v{v_t2}, s{s_p1}, v{v_t2}         ; e'
    v_and_b32 v{v_t3}, 1, v{v_t2}
    v_lshlrev_b32 v{v_T+ct}, 15, v{v_t3}        ; par*32768
    v_bfe_u32 v{v_t3}, v{v_t2}, 6, 2            ; tile = (e'>>6)&3
    v_lshl_add_u32 v{v_T+ct}, v{v_t3}, 13, v{v_T+ct}
    v_bfe_u32 v{v_t3}, v{v_t2}, 1, 5            ; n = (e'>>1)&31
    v_lshl_add_u32 v{v_T+ct}, v{v_t3}, 4, v{v_T+ct}
    v_lshl_add_u32 v{v_T+ct}, v{v_t1}, 10, v{v_T+ct}   ; + 2h*512
""")
    A(f"""
    s_xor_b32 s{s_t0}, s{s_u}, s{s_p0}
    s_add_u32 s{s_t0}, s{s_t0}, s{s_p1}
    s_and_b32 s{s_t0}, s{s_t0}, 31              ; mirror: (513 + ~u) & 31 = (512-u)&31 = (32-u)&31
    s_lshl_b32 s{s_toff}, s{s_t0}, 16
    s_lshl_b32 s{s_t0}, s{s_i}, 12
    s_add_u32 s{s_toff}, s{s_toff}, s{s_t0}
    s_add_u32 s{s_toff}, s{s_toff}, {T_OFF}
    v_lshlrev_b32 v{v_M}, 18, v{v_t0}
    v_lshl_add_u32 v{v_M}, v{v_t1}, 4, v{v_M}
    v_lshlrev_b32 v{v_x}, 16, v{v_t0}
    v_lshl_add_u32 v{v_x}, v{v_t1}, 4, v{v_x}
    s_lshl_b32 s{s_moff}, s{s_t1}, 12
    s_lshl_b32 s{s_t0}, s{s_i}, 6
    s_add_u32 s{s_moff}, s{s_moff}, s{s_t0}
    s_lshl_b32 s{s_xoff}, s{s_t1}, 10
    s_add_u32 s{s_xoff}, s{s_xoff}, s{s_t0}
    s_lshl_b32 s{s_t0}, s{s_cb}, 7
    s_add_u32 s{s_xoff}, s{s_xoff}, s{s_t0}
""")
    for P in range(2):
        A(f"buffer_load_dwordx4 {vr(vMr+8*P,4)}, v{v_M}, {sr(sRe,4)}, s{s_moff} offen offset:{32*P}")
        A(f"buffer_load_dwordx4 {vr(vMr+8*P+4,4)}, v{v_M}, {sr(sIm,4)}, s{s_moff} offen offset:{32*P}")
    toffs = [0, 512, 2048, 2560]
    for qq in range(4):
        for ct in range(2):
            A(f"buffer_load_dwordx4 {vr(vTf+(qq*2+ct)*4,4)}, v{v_T+ct}, {sr(sH,4)}, s{s_toff} offen offset:{toffs[qq]}")
    for P in range(2):
        A(f"buffer_load_dwordx4 {vr(vX+4*P,4)}, v{v_x}, {sr(sX,4)}, s{s_xoff} offen offset:{32*P}")
    vm += ['y'] * 14
    for s in range(1, D):
        vm += [f's{s}'] * issue_stage(s)
    A(f"""
    v_bfe_u32 v{v_t0}, v{v_lane}, 2, 2          ; r
    v_lshlrev_b32 v{v_r}, 7, v{v_t0}            ; r*128
    v_lshl_add_u32 v{v_r}, v{v_t1}, 9, v{v_r}   ; + 4h*128
    v_and_b32 v{v_t2}, 3, v{v_lane}
    v_lshl_add_u32 v{v_r}, v{v_t2}, 3, v{v_r}   ; + 8c
    v_bfe_u32 v{v_t2}, v{v_lane}, 4, 1
    v_lshl_add_u32 v{v_r}, v{v_t2}, 5, v{v_r}   ; + 32 cg
    v_bfe_u32 v{v_t2}, v{v_lane}, 3, 1          ; (r>>1)&1
    v_lshl_add_u32 v{v_r}, v{v_t2}, 6, v{v_r}
    s_mul_i32 s{s_t0}, s{s_i}, {8192+64}
    v_xor_b32 v{v_r}, s{s_t0}, v{v_r}
    v_xor_b32 v{v_r+1}, 64, v{v_r}
    s_lshl_b32 s{s_t0}, s{s_w}, 12
    s_add_u32 s{s_t0}, s{s_t0}, {EXO}
    v_add_u32 v{v_ex}, s{s_t0}, v{v_h}
    s_or_b32 s{s_t0}, s{s_cb}, s{s_i}
    s_cmp_eq_u32 s{s_t0}, 0
    s_cselect_b32 s{s_zm}, -1, 0
    s_mov_b32 s{s_zm+1}, 0
    s_mov_b32 s{s_p0}, 0x05040100
    s_mov_b32 s{s_p1}, 0x07060302
""")

    def wait_tag(tag):
        last = max(k for k, t in enumerate(vm) if t == tag)
        return len(vm) - 1 - last

    def reads(s, ks, buf):
        slot = (s % R) * 16384
        for ct in range(2):
            for p in range(2):
                A(f"ds_read_b64_tr_b16 {vr(vWf+buf*8+ct*4+2*p,2)}, v{v_r+ct} offset:{slot+ks*2048+p*1024}")

    first = [True, True]
    for s in range(NST):
        n = 4 if s < NST - 1 else 3
        A(f"s_waitcnt vmcnt({wait_tag(f's{s}')})")
        A("s_barrier")
        if s == 0:
            stamp(A, opt, 2)
        if s == NST - 1:
            stamp(A, opt, 3)
        reads(s, 0, 0)
        if s + D < NST:
            vm += [f's{s+D}'] * issue_stage(s + D)
        if s == 1:
            for P in range(2):
                for k in range(4):
                    A(f"v_xor_b32 v{vMr+8*P+4+k}, s{s_sign}, v{vMr+8*P+4+k}")
                for half in range(2):
                    f = vMf + (2 * P + half) * 4
                    for k in range(2):
                        Rr = vMr + 8 * P + 2 * half + k
                        A(f"v_perm_b32 v{f+2*k}, v{Rr+4}, v{Rr}, s{s_p0}")
                        A(f"v_perm_b32 v{f+2*k+1}, v{Rr+4}, v{Rr}, s{s_p1}")
            A("s_nop 1")
            for qq in range(4):
                for ct in range(2):
                    c = '0' if qq == 0 else vr(accY[ct], 16)
                    A(f"v_mfma_f32_32x32x16_bf16 {vr(accY[ct],16)}, {vr(vTf+(qq*2+ct)*4,4)}, {vr(vMf+qq*4,4)}, {c}")
        if s == 3:
            for q in range(4):
                A(f"ds_write_b128 v{v_ex}, {vr(accY[1]+4*q,4)} offset:{16384+1024*q}")
        if s == 5:
            A(f"v_xor_b32 v{v_t0}, 8192, v{v_ex}")
            for q in range(4):
                A(f"ds_read_b128 {vr(accY[1]+4*q,4)}, v{v_t0} offset:{16384+1024*q}")
            A("s_waitcnt lgkmcnt(0)")
            for q in range(0, 16, 2):
                A(f"v_pk_add_f32 {vr(accY[0]+q,2)}, {vr(accY[0]+q,2)}, {vr(accY[1]+q,2)}")
            A(f"v_cndmask_b32 v{accY[0]}, v{accY[0]}, 0, {sr(s_zm,2)}")
            for P in range(2):
                A(f"v_permlane32_swap_b32 v{vX+4*P}, v{vX+4*P+2}")
                A(f"v_permlane32_swap_b32 v{vX+4*P+1}, v{vX+4*P+3}")
            A("s_nop 1")
            for k in range(8):
                A(f"v_lshlrev_b32 v{accY[1]+2*k}, 16, v{vX+k}")
                A(f"v_and_b32 v{accY[1]+2*k+1}, 0xffff0000, v{vX+k}")
        for ks in range(n):
            if ks + 1 < n:
                reads(s, ks + 1, (ks + 1) & 1)
                A("s_waitcnt lgkmcnt(4)")
            else:
                A("s_waitcnt lgkmcnt(0)")
            hb = vHf + 16 * (s % R) + 4 * ks
            for ct in (1, 0):
                c = '0' if first[ct] else vr(accO[ct], 16)
                first[ct] = False
                A(f"v_mfma_f32_32x32x16_bf16 {vr(accO[ct],16)}, {vr(vWf+(ks&1)*8+ct*4,4)}, {vr(hb,4)}, {c}")
    stamp(A, opt, 4)
    A("s_nop 10")
    for q in range(4):
        A(f"ds_write_b128 v{v_ex}, {vr(accO[1]+4*q,4)} offset:{1024*q}")
    A("s_waitcnt lgkmcnt(0)")
    A("s_barrier")
    for q in range(4):
        A(f"ds_read_b128 {vr(accO[1]+4*q,4)}, v{v_t0} offset:{1024*q}")
    A(f"s_mov_b32 s{s_c}, {hex(f2u(-LOG2E))}")
    tmp = vTf
    for q in range(4):
        A(f"s_waitcnt lgkmcnt({3-q})")
        o = accO[0] + 4 * q
        A(f"v_pk_add_f32 {vr(o,2)}, {vr(o,2)}, {vr(accO[1]+4*q,2)}")
        A(f"v_pk_add_f32 {vr(o+2,2)}, {vr(o+2,2)}, {vr(accO[1]+4*q+2,2)}")
        for k in range(4):
            A(f"v_mul_f32 v{tmp+4*q+k}, s{s_c}, v{o+k}")
        for k in range(4):
            A(f"v_exp_f32 v{tmp+4*q+k}, v{tmp+4*q+k}")
        for k in range(0, 4, 2):
            A(f"v_pk_mul_f32 {vr(o+k,2)}, {vr(o+k,2)}, {vr(accY[0]+4*q+k,2)}")
        for k in range(4):
            A(f"v_add_f32 v{tmp+4*q+k}, 1.0, v{tmp+4*q+k}")
        for k in range(4):
            A(f"v_rcp_f32 v{tmp+4*q+k}, v{tmp+4*q+k}")
    A("s_nop 0")
    for q in range(4):
        o = accO[0] + 4 * q
        for k in range(0, 4, 2):
            A(f"v_pk_fma_f32 {vr(o+k,2)}, {vr(o+k,2)}, {vr(tmp+4*q+k,2)}, {vr(accY[1]+4*q+k,2)}")
        A(f"v_cvt_pk_bf16_f32 v{vX+2*q}, v{o}, v{o+1}")
        A(f"v_cvt_pk_bf16_f32 v{vX+2*q+1}, v{o+2}, v{o+3}")
        if q & 1:
            P = q >> 1
            A("s_nop 1")
            A(f"v_permlane32_swap_b32 v{vX+4*P}, v{vX+4*P+2}")
            A(f"v_permlane32_swap_b32 v{vX+4*P+1}, v{vX+4*P+3}")
            A(f"buffer_store_dwordx4 {vr(vX+4*P,4)}, v{v_x}, {sr(sOut,4)}, s{s_xoff} offen offset:{32*P}")
    if opt.get('stamps'):
        stamp(A, opt, 5)
        A("s_waitcnt vmcnt(0)")
        stamp(A, opt, 6)
        emit_stamp_store(A, 7, sH, 0x1000000 + 0x40000, s_w, v_lane)
    A("K2_end:")
    A("s_endpgm")
    return lds


def emit_stamp_store(A, n, srd, base, s_w, v_lane):
    A("s_memrealtime s[68:69]")
    A("s_waitcnt lgkmcnt(0)")
    for k in range(n):
        A(f"s_sub_u32 s64, s{70+2*k}, s70")
        A(f"v_writelane_b32 v2, s64, {k}")
    A("v_writelane_b32 v2, s66, 14")
    A("v_writelane_b32 v2, s68, 15")
    A(f"s_lshl_b32 s64, s2, 2\ns_add_u32 s64, s64, s{s_w}\ns_lshl_b32 s64, s64, 6\ns_add_u32 s64, s64, {base}")
    A(f"s_mov_b32 s{srd+2}, 0x2000000")
    A(f"v_lshlrev_b32 v3, 2, v{v_lane}")
    A(f"v_cmp_gt_u32 vcc, 16, v{v_lane}")
    A("s_and_saveexec_b64 s[62:63], vcc")
    A(f"buffer_store_dword v2, v3, {sr(srd,4)}, s64 offen")
    A("s_waitcnt vmcnt(0)")


HEADER = open('cdna_kernels/' + NAME + '.s.ref').read().split('; Override launch')[0] if True else ''


def build(opt):
    A = Asm()
    parts = []
    launches = []
    body = Asm()
    descs = []
    if opt.get('k1', True):
        from gen_k1 import gen_k1
        body(".globl k1_kernel\n.p2align 8\n.type k1_kernel,@function")
        lds1, vg, acc = gen_k1(body, opt)
        launches.append(f"; @launch kernel=k1_kernel grid=(256,1,1) block=(256,1,1) lds={lds1}")
        descs.append(kdesc('k1_kernel', vg, 102 if opt.get('stamps') else 96, acc))
    if opt.get('k2', True):
        body(".globl k2_kernel\n.p2align 8\n.type k2_kernel,@function")
        lds2 = gen_k2(body, opt)
        lds2 = max(lds2, opt.get('k2_lds_min', 0))
        launches.append(f"; @launch kernel=k2_kernel grid=(256,1,1) block=(256,1,1) lds={lds2}")
        descs.append(kdesc('k2_kernel', 256, 102 if opt.get('stamps') else 96, 256))
    out = HEADER + '\n'.join(launches) + '\n'
    out += '.amdgcn_target "amdgcn-amd-amdhsa--gfx950"\n.text\n'
    out += body.text()
    out += '.section .rodata,"a"\n'
    for d in descs:
        out += '.p2align 6\n' + d
    return out


if __name__ == '__main__':
    opt = {}
    fn = sys.argv[1]
    for a in sys.argv[2:]:
        k, v = a.split('=')
        opt[k] = int(v)
    open(fn, 'w').write(build(opt))
```

```python
import sys

NAME = 'recurrent_scan__spectral_fnet__geglu_ffn__prompt'
T_OFF = 0x600000
WS_USED = 0x800000
LOG2E = 1.4426950408889634
TSIGN = 1


def f2u(x):
    import struct
    return struct.unpack('<I', struct.pack('<f', x))[0]


class Asm:
    def __init__(self):
        self.L = []

    def __call__(self, s):
        for line in s.split('\n'):
            line = line.strip()
            if line:
                self.L.append(('' if line.endswith(':') else '    ') + line)

    def text(self):
        return '\n'.join(self.L) + '\n'


def vr(a, n=1):
    return f"v{a}" if n == 1 else f"v[{a}:{a+n-1}]"


def ar(a, n=1):
    return f"a{a}" if n == 1 else f"a[{a}:{a+n-1}]"


def sr(a, n=1):
    return f"s{a}" if n == 1 else f"s[{a}:{a+n-1}]"


def kdesc(name, vgpr, sgpr, accum):
    return f""".amdhsa_kernel {name}
  .amdhsa_next_free_vgpr {vgpr}
  .amdhsa_next_free_sgpr {sgpr}
  .amdhsa_accum_offset {accum}
  .amdhsa_group_segment_fixed_size 0
  .amdhsa_kernarg_size 96
  .amdhsa_user_sgpr_count 2
  .amdhsa_user_sgpr_kernarg_segment_ptr 1
  .amdhsa_system_sgpr_workgroup_id_x 1
  .amdhsa_float_denorm_mode_32 3
.end_amdhsa_kernel
"""


def stamp(A, opt, idx):
    if opt.get('stamps'):
        A(f"s_memtime s[{70+2*idx}:{71+2*idx}]")


def gen_k2(A, opt):
    D = opt.get('k2_dist', 3)
    R = D + 1
    NST = 11
    rot = opt.get('k2_rot', 0)
    ypos = opt.get('k2_ypos', 1)
    sH, sWd, sT, sX, sOut = 8, 12, 16, 24, 28
    s_w, s_j, s_i, s_u, s_cb = 32, 33, 34, 35, 36
    s_hoff, s_woff, s_m0, s_t0, s_t1, s_sign = 37, 38, 39, 40, 41, 42
    s_toff, s_st, s_xoff = 43, 44, 45
    s_p0, s_p1 = 46, 47
    s_zm = 48
    s_c = 50
    s_hb, s_wb, s_a = 51, 52, 53
    v_lane, v_t0, v_t1, v_t2, v_t3 = 1, 2, 3, 4, 5
    v_h = 6
    v_w = 8
    v_r = 12
    v_T = 14
    v_tok = 16
    v_x = 17
    v_ex = 18
    vG = 20
    accO = [32, 48]
    accY = [64, 80]
    vTf = 96
    vMf = 144
    vX = 160
    vWf = 168
    vHf = 184
    assert vHf + 16 * R <= 256
    EXO = R * 16384
    lds = EXO + 32768

    A(f"""
k2_kernel:
    s_cmp_ge_u32 s2, 256
    s_cbranch_scc1 K2_end
    s_load_dwordx2 {sr(sH,2)}, s[0:1], 88
    s_load_dwordx2 {sr(sWd,2)}, s[0:1], 64
    s_load_dwordx2 {sr(sT,2)}, s[0:1], 88
    s_load_dwordx2 {sr(sX,2)}, s[0:1], 0
    s_load_dwordx2 {sr(sOut,2)}, s[0:1], 72
""")
    if opt.get('stamps'):
        A("s_memrealtime s[66:67]")
    stamp(A, opt, 0)
    A(f"""
    v_lshrrev_b32 v{v_t0}, 6, v0
    v_and_b32 v{v_lane}, 63, v0
    s_mov_b32 s{sH+2}, {64*86*1024}
    s_mov_b32 s{sH+3}, 0x20000
    v_readfirstlane_b32 s{s_w}, v{v_t0}
    s_mov_b32 s{sWd+2}, {1376*1024}
    s_mov_b32 s{sWd+3}, 0x20000
""")
    if opt.get('k2_map', 0) == 0:
        A(f"""
    s_lshr_b32 s{s_t0}, s2, 3
    s_and_b32 s{s_u}, s{s_t0}, 7
    s_lshr_b32 s{s_cb}, s{s_t0}, 3
    s_and_b32 s{s_t0}, s2, 6
    s_lshl_b32 s{s_t0}, s{s_t0}, 2
    s_add_u32 s{s_u}, s{s_u}, s{s_t0}
    s_and_b32 s{s_t0}, s2, 1
    s_lshl_b32 s{s_t0}, s{s_t0}, 2
    s_add_u32 s{s_cb}, s{s_cb}, s{s_t0}
""")
    else:
        A(f"""
    s_bfe_u32 s{s_u}, s2, 0x20003
    s_lshr_b32 s{s_cb}, s2, 5
    s_and_b32 s{s_t0}, s2, 7
    s_lshl_b32 s{s_t0}, s{s_t0}, 2
    s_add_u32 s{s_u}, s{s_u}, s{s_t0}
""")
    A(f"""
    s_and_b32 s{s_j}, s{s_w}, 1
    s_lshr_b32 s{s_i}, s{s_w}, 1
    ; h
    v_lshlrev_b32 v{v_h}, 4, v{v_lane}
    s_lshl_b32 s{s_a}, s{s_j}, 5
    s_add_u32 s{s_a}, s{s_a}, s{s_u}          ; a = u + 32 j
    s_mul_i32 s{s_hb}, s{s_a}, {86*1024}
    s_mul_i32 s{s_t0}, s{s_i}, {44*1024}
    s_add_u32 s{s_hb}, s{s_hb}, s{s_t0}
    v_lshrrev_b32 v{v_t0}, 3, v{v_lane}
    v_and_b32 v{v_t1}, 7, v{v_lane}
    v_lshrrev_b32 v{v_t2}, 2, v{v_lane}
    v_and_b32 v{v_t2}, 4, v{v_t2}
    v_xor_b32 v{v_t1}, v{v_t1}, v{v_t2}
    v_lshlrev_b32 v{v_t1}, 4, v{v_t1}
    v_lshl_add_u32 v{v_w}, v{v_t0}, 10, v{v_t1}
    v_add_u32 v{v_w+1}, {8192-1024}, v{v_w}
    v_add_u32 v{v_w+2}, {2*(8192-1024)}, v{v_w}
    v_add_u32 v{v_w+3}, {3*(8192-1024)}, v{v_w}
    s_mul_i32 s{s_wb}, s{s_i}, {704*1024}
    s_lshl_b32 s{s_t0}, s{s_j}, 15
    s_add_u32 s{s_wb}, s{s_wb}, s{s_t0}
    s_lshl_b32 s{s_t0}, s{s_cb}, 7
    s_add_u32 s{s_wb}, s{s_wb}, s{s_t0}
    s_lshl_b32 s{s_m0}, s{s_i}, 13
    s_lshl_b32 s{s_t0}, s{s_j}, 12
    s_add_u32 s{s_m0}, s{s_m0}, s{s_t0}         ; lds dest base in slot = i*8192 + j*4096
""")
    if rot == 1:
        A(f"s_and_b32 s{s_st}, s{s_cb}, 3\ns_mul_i32 s{s_st}, s{s_st}, 3")
    elif rot == 2:
        A(f"s_and_b32 s{s_st}, s{s_cb}, 1\ns_mul_i32 s{s_st}, s{s_st}, 5")
    elif rot == 3:
        A(f"s_and_b32 s{s_st}, s{s_u}, 3\ns_add_u32 s{s_st}, s{s_st}, s{s_cb}")
    elif rot == 4:
        A(f"s_mov_b32 s{s_st}, s{s_cb}")
    else:
        A(f"s_mov_b32 s{s_st}, 0")

    def stage_parts(s):
        slot = (s % R) * 16384
        hb = vHf + 16 * (s % R)
        P = []
        for q in range(4):
            off = f" offset:{1024*q}" if q else ""
            t = ""
            if q == 0:
                t = (f"s_lshl_b32 s{s_hoff}, s{s_st}, 12\ns_add_u32 s{s_hoff}, s{s_hoff}, s{s_hb}\n"
                     f"s_lshl_b32 s{s_woff}, s{s_st}, 16\ns_add_u32 s{s_woff}, s{s_woff}, s{s_wb}\n"
                     f"s_add_u32 m0, s{s_m0}, {slot}\n")
            t += f"buffer_load_dwordx4 {vr(hb+4*q,4)}, v{v_h}, {sr(sH,4)}, s{s_hoff} offen{off}\n"
            t += f"buffer_load_dwordx4 v{v_w+q}, {sr(sWd,4)}, s{s_woff} offen{off} lds\n"
            if q == 3 and s < NST - 1:
                t += f"s_add_u32 s{s_st}, s{s_st}, 1\n"
                if rot:
                    t += f"s_cmp_eq_u32 s{s_st}, {NST}\ns_cselect_b32 s{s_st}, 0, s{s_st}\n"
            P.append(t)
        return P

    def issue_stage(s):
        for t in stage_parts(s):
            A(t)
        return 8

    A("s_waitcnt lgkmcnt(0)")
    stamp(A, opt, 1)
    vm = []
    vm += ['s0'] * issue_stage(0)
    vm += ['s1'] * issue_stage(1)
    A(f"""
    s_mov_b32 s{sT+2}, {WS_USED}
    s_mov_b32 s{sT+3}, 0x20000
    s_mov_b32 s{sX+2}, {2048*1024}
    s_mov_b32 s{sX+3}, 0x20000
    s_mov_b32 s{sOut+2}, {2048*1024}
    s_mov_b32 s{sOut+3}, 0x20000
    ; T voffsets
    v_and_b32 v{v_t0}, 31, v{v_lane}            ; n
    v_lshrrev_b32 v{v_t1}, 5, v{v_lane}         ; h
    s_lshl_b32 s{s_t0}, s{s_cb}, 1
    s_add_u32 s{s_t0}, s{s_t0}, s{s_i}
    s_lshl_b32 s{s_t0}, s{s_t0}, 5
    v_add_u32 v{v_ex}, s{s_t0}, v{v_t0}
    s_cmp_ge_u32 s{s_cb}, 4
    s_cselect_b32 s{s_sign}, {'-1.0, 1.0' if TSIGN else '1.0, -1.0'}
    s_cselect_b32 s{s_p0}, -1, 0                ; mirror: e' = 512 - e = (e ^ -1) + 513
    s_cselect_b32 s{s_p1}, 513, 0
""")
    for ct in range(2):
        if ct == 1:
            A(f"v_xor_b32 v{v_ex}, 32, v{v_ex}")
        A(f"""
    v_xor_b32 v{v_t2}, s{s_p0}, v{v_ex}
    v_add_u32 v{v_t2}, s{s_p1}, v{v_t2}         ; e'
    v_and_b32 v{v_t3}, 1, v{v_t2}
    v_lshlrev_b32 v{v_T+ct}, 15, v{v_t3}        ; par*32768
    v_bfe_u32 v{v_t3}, v{v_t2}, 6, 2            ; tile = (e'>>6)&3
    v_lshl_add_u32 v{v_T+ct}, v{v_t3}, 13, v{v_T+ct}
    v_bfe_u32 v{v_t3}, v{v_t2}, 1, 5            ; n = (e'>>1)&31
    v_lshl_add_u32 v{v_T+ct}, v{v_t3}, 4, v{v_T+ct}
    v_lshl_add_u32 v{v_T+ct}, v{v_t1}, 9, v{v_T+ct}
""")
    A(f"""
    s_xor_b32 s{s_t0}, s{s_u}, s{s_p0}
    s_add_u32 s{s_t0}, s{s_t0}, s{s_p1}
    s_and_b32 s{s_t0}, s{s_t0}, 31              ; mirror: (513 + ~u) & 31 = (512-u)&31 = (32-u)&31
    s_lshl_b32 s{s_toff}, s{s_t0}, 16
    s_lshl_b32 s{s_t0}, s{s_i}, 12
    s_add_u32 s{s_toff}, s{s_toff}, s{s_t0}
    s_add_u32 s{s_toff}, s{s_toff}, {T_OFF}
    v_lshlrev_b32 v{v_x}, 16, v{v_t0}
    v_lshl_add_u32 v{v_x}, v{v_t1}, 4, v{v_x}
    s_lshl_b32 s{s_xoff}, s{s_a}, 10
    s_lshl_b32 s{s_t0}, s{s_i}, 6
    s_add_u32 s{s_xoff}, s{s_xoff}, s{s_t0}
    s_lshl_b32 s{s_t0}, s{s_cb}, 7
    s_add_u32 s{s_xoff}, s{s_xoff}, s{s_t0}
    v_lshl_add_u32 v{v_tok}, v{v_t0}, 6, s{s_a}   ; token t = a + 64 b
""")
    A(f"""
    v_bfe_u32 v{v_t0}, v{v_lane}, 2, 2          ; r
    v_lshlrev_b32 v{v_r}, 7, v{v_t0}            ; r*128
    v_lshl_add_u32 v{v_r}, v{v_t1}, 9, v{v_r}   ; + 4h*128
    v_and_b32 v{v_t2}, 3, v{v_lane}
    v_lshl_add_u32 v{v_r}, v{v_t2}, 3, v{v_r}   ; + 8c
    v_bfe_u32 v{v_t2}, v{v_lane}, 4, 1
    v_lshl_add_u32 v{v_r}, v{v_t2}, 5, v{v_r}   ; + 32 cg
    v_bfe_u32 v{v_t2}, v{v_lane}, 3, 1          ; (r>>1)&1
    v_lshl_add_u32 v{v_r}, v{v_t2}, 6, v{v_r}
    s_mul_i32 s{s_t0}, s{s_i}, {8192+64}
    v_xor_b32 v{v_r}, s{s_t0}, v{v_r}
    v_xor_b32 v{v_r+1}, 64, v{v_r}
    s_lshl_b32 s{s_t0}, s{s_w}, 12
    s_add_u32 s{s_t0}, s{s_t0}, {EXO}
    v_add_u32 v{v_ex}, s{s_t0}, v{v_h}
    s_or_b32 s{s_t0}, s{s_cb}, s{s_i}
    s_cmp_eq_u32 s{s_t0}, 0
    s_cselect_b32 s{s_zm}, -1, 0
    s_mov_b32 s{s_zm+1}, 0
""")
    A(f"""
    s_lshl_b32 s{s_t0}, s{s_i}, 5
    v_lshl_add_u32 v{v_t2}, v{v_t1}, 2, s{s_t0}  ; a'0 = 32 i + 4 h
    v_mul_u32_u24 v{v_t2}, v{v_t2}, v{v_tok}     ; t * a'0
    v_lshlrev_b32 v{v_t3}, 2, v{v_tok}           ; 4 t
    s_mov_b32 s{s_c}, {hex(f2u(1.0/2048))}
""")
    tw = []
    for qq in range(4):
        for k in range(4):
            g = vG + 2 * (k & 1)
            tw += [f"v_and_b32 v{g}, 2047, v{v_t2}",
                   f"v_add_u32 v{v_t2}, v{v_t2}, v{v_tok}",
                   f"v_cvt_f32_u32 v{g}, v{g}",
                   f"v_mul_f32 v{g}, s{s_c}, v{g}",
                   f"v_sin_f32 v{g+1}, v{g}",
                   f"v_cos_f32 v{g}, v{g}",
                   f"v_mul_f32 v{g+1}, s{s_sign}, v{g+1}",
                   f"v_cvt_pk_bf16_f32 v{vMf+4*qq+k}, v{g}, v{g+1}"]
        tw.append(f"v_add_u32 v{v_t2}, v{v_t2}, v{v_t3}")
    for x in tw[:66]:
        A(x)
    for s in range(2, D):
        vm += [f's{s}'] * issue_stage(s)

    def wait_tag(tag):
        last = max(k for k, t in enumerate(vm) if t == tag)
        return len(vm) - 1 - last

    def reads(s, ks, buf):
        slot = (s % R) * 16384
        for ct in range(2):
            for p in range(2):
                A(f"ds_read_b64_tr_b16 {vr(vWf+buf*8+ct*4+2*p,2)}, v{v_r+ct} offset:{slot+ks*2048+p*1024}")

    first = [True, True]
    ydo = ypos + D + 2
    for s in range(NST):
        A(f"s_waitcnt vmcnt({wait_tag(f's{s}')})")
        A("s_barrier")
        if s in (0, 2, 4, 6, 8, 10):
            stamp(A, opt, 2 + s // 2)
        reads(s, 0, 0)
        parts = [""] * 4
        if s + D < NST:
            parts = stage_parts(s + D)
        extra = [[] for _ in range(4)]
        if s in (0, 1):
            h = tw[66:][33 * s:33 * s + 33]
            for q in range(4):
                extra[q] = h[len(h) * q // 4:len(h) * (q + 1) // 4]
        if s in (ypos, ypos + 1):
            for q in range(4):
                qq, ct = 2 * (s - ypos) + (q >> 1), q & 1
                parts[q] += f"buffer_load_dwordx4 {vr(vTf+(qq*2+ct)*4,4)}, v{v_T+ct}, {sr(sT,4)}, s{s_toff} offen offset:{1024*qq}\n"
            parts[3] += f"buffer_load_dwordx4 {vr(vX+4*(s-ypos),4)}, v{v_x}, {sr(sX,4)}, s{s_xoff} offen offset:{32*(s-ypos)}\n"
        for t in parts:
            for line in t.split("\n"):
                if line.startswith("buffer"):
                    vm.append(f's{s+D}' if ('lds' in line or f", v{v_h}," in line) else 'y')
        if s == ydo:
            for qq in range(4):
                for ct in range(2):
                    c = '0' if qq == 0 else vr(accY[ct], 16)
                    A(f"v_mfma_f32_32x32x16_bf16 {vr(accY[ct],16)}, {vr(vTf+(qq*2+ct)*4,4)}, {vr(vMf+qq*4,4)}, {c}")
        if s == ydo + 1:
            for q in range(4):
                A(f"ds_write_b128 v{v_ex}, {vr(accY[1]+4*q,4)} offset:{16384+1024*q}")
        if s == ydo + 2:
            A(f"v_xor_b32 v{v_t0}, 8192, v{v_ex}")
            for q in range(4):
                A(f"ds_read_b128 {vr(accY[1]+4*q,4)}, v{v_t0} offset:{16384+1024*q}")
            A("s_waitcnt lgkmcnt(0)")
            for q in range(0, 16, 2):
                A(f"v_pk_add_f32 {vr(accY[0]+q,2)}, {vr(accY[0]+q,2)}, {vr(accY[1]+q,2)}")
            A(f"v_cndmask_b32 v{accY[0]}, v{accY[0]}, 0, {sr(s_zm,2)}")
            for P in range(2):
                A(f"v_permlane32_swap_b32 v{vX+4*P}, v{vX+4*P+2}")
                A(f"v_permlane32_swap_b32 v{vX+4*P+1}, v{vX+4*P+3}")
            A("s_nop 1")
            for k in range(8):
                A(f"v_lshlrev_b32 v{accY[1]+2*k}, 16, v{vX+k}")
                A(f"v_and_b32 v{accY[1]+2*k+1}, 0xffff0000, v{vX+k}")
        for ks in range(4):
            if ks + 1 < 4:
                reads(s, ks + 1, (ks + 1) & 1)
            hb = vHf + 16 * (s % R) + 4 * ks
            A(parts[ks])
            for x in extra[ks]:
                A(x)
            A(f"s_waitcnt lgkmcnt({4 if ks + 1 < 4 else 0})")
            for ct in (1, 0):
                c = '0' if first[ct] else vr(accO[ct], 16)
                first[ct] = False
                A(f"v_mfma_f32_32x32x16_bf16 {vr(accO[ct],16)}, {vr(vWf+(ks&1)*8+ct*4,4)}, {vr(hb,4)}, {c}")
    assert ydo + 2 < NST
    stamp(A, opt, 8)
    A("s_nop 10")
    for q in range(4):
        A(f"ds_write_b128 v{v_ex}, {vr(accO[1]+4*q,4)} offset:{1024*q}")
    A("s_waitcnt lgkmcnt(0)")
    A("s_barrier")
    for q in range(4):
        A(f"ds_read_b128 {vr(accO[1]+4*q,4)}, v{v_t0} offset:{1024*q}")
    A(f"s_mov_b32 s{s_c}, {hex(f2u(-LOG2E))}")
    tmp = vTf
    for q in range(4):
        A(f"s_waitcnt lgkmcnt({3-q})")
        o = accO[0] + 4 * q
        A(f"v_pk_add_f32 {vr(o,2)}, {vr(o,2)}, {vr(accO[1]+4*q,2)}")
        A(f"v_pk_add_f32 {vr(o+2,2)}, {vr(o+2,2)}, {vr(accO[1]+4*q+2,2)}")
        for k in range(4):
            A(f"v_mul_f32 v{tmp+4*q+k}, s{s_c}, v{o+k}")
        for k in range(4):
            A(f"v_exp_f32 v{tmp+4*q+k}, v{tmp+4*q+k}")
        for k in range(0, 4, 2):
            A(f"v_pk_mul_f32 {vr(o+k,2)}, {vr(o+k,2)}, {vr(accY[0]+4*q+k,2)}")
        for k in range(4):
            A(f"v_add_f32 v{tmp+4*q+k}, 1.0, v{tmp+4*q+k}")
        for k in range(4):
            A(f"v_rcp_f32 v{tmp+4*q+k}, v{tmp+4*q+k}")
    A("s_nop 0")
    for q in range(4):
        o = accO[0] + 4 * q
        for k in range(0, 4, 2):
            A(f"v_pk_fma_f32 {vr(o+k,2)}, {vr(o+k,2)}, {vr(tmp+4*q+k,2)}, {vr(accY[1]+4*q+k,2)}")
        A(f"v_cvt_pk_bf16_f32 v{vX+2*q}, v{o}, v{o+1}")
        A(f"v_cvt_pk_bf16_f32 v{vX+2*q+1}, v{o+2}, v{o+3}")
        if q & 1:
            P = q >> 1
            A("s_nop 1")
            A(f"v_permlane32_swap_b32 v{vX+4*P}, v{vX+4*P+2}")
            A(f"v_permlane32_swap_b32 v{vX+4*P+1}, v{vX+4*P+3}")
            A(f"buffer_store_dwordx4 {vr(vX+4*P,4)}, v{v_x}, {sr(sOut,4)}, s{s_xoff} offen offset:{32*P} {opt.get('out_aux','')}")
    if opt.get('stamps'):
        stamp(A, opt, 9)
        A("s_waitcnt vmcnt(0)")
        stamp(A, opt, 10)
        emit_stamp_store(A, 11, sH, 0x1000000 + 0x40000, s_w, v_lane)
    A("K2_end:")
    A("s_endpgm")
    return lds


def emit_stamp_store(A, n, srd, base, s_w, v_lane):
    A("s_memrealtime s[68:69]")
    A("s_waitcnt lgkmcnt(0)")
    for k in range(n):
        A(f"s_sub_u32 s64, s{70+2*k}, s70")
        A(f"v_writelane_b32 v2, s64, {k}")
    A("v_writelane_b32 v2, s66, 14")
    A("v_writelane_b32 v2, s68, 15")
    A(f"s_lshl_b32 s64, s2, 2\ns_add_u32 s64, s64, s{s_w}\ns_lshl_b32 s64, s64, 6\ns_add_u32 s64, s64, {base}")
    A(f"s_mov_b32 s{srd+2}, 0x2000000")
    A(f"v_lshlrev_b32 v3, 2, v{v_lane}")
    A(f"v_cmp_gt_u32 vcc, 16, v{v_lane}")
    A("s_and_saveexec_b64 s[62:63], vcc")
    A(f"buffer_store_dword v2, v3, {sr(srd,4)}, s64 offen")
    A("s_waitcnt vmcnt(0)")


HEADER = open('cdna_kernels/' + NAME + '.s.ref').read().split('; Override launch')[0] if True else ''


def build(opt):
    A = Asm()
    parts = []
    launches = []
    body = Asm()
    descs = []
    if opt.get('k1', True):
        from gen_k1 import gen_k1
        body(".globl k1_kernel\n.p2align 8\n.type k1_kernel,@function")
        lds1, vg, acc = gen_k1(body, opt)
        launches.append(f"; @launch kernel=k1_kernel grid=(256,1,1) block=(256,1,1) lds={lds1}")
        descs.append(kdesc('k1_kernel', vg, 102, acc))
    if opt.get('k2', True):
        body(".globl k2_kernel\n.p2align 8\n.type k2_kernel,@function")
        lds2 = gen_k2(body, opt)
        lds2 = max(lds2, opt.get('k2_lds_min', 0))
        launches.append(f"; @launch kernel=k2_kernel grid=(256,1,1) block=(256,1,1) lds={lds2}")
        descs.append(kdesc('k2_kernel', 256, 102, 256))
    out = HEADER + '\n'.join(launches) + '\n'
    out += '.amdgcn_target "amdgcn-amd-amdhsa--gfx950"\n.text\n'
    out += body.text()
    out += '.section .rodata,"a"\n'
    for d in descs:
        out += '.p2align 6\n' + d
    return out


if __name__ == '__main__':
    opt = {}
    fn = sys.argv[1]
    for a in sys.argv[2:]:
        k, v = a.split('=')
        opt[k] = int(v)
    open(fn, 'w').write(build(opt))
```

```python
import sched
from gen import Asm, vr, ar, sr, f2u, stamp, emit_stamp_store, T_OFF, WS_USED, LOG2E

GC = 2.0 * 0.7978845608028654 * LOG2E

sX, sWg, sWu, sWs, sHr, sHi = 8, 12, 16, 20, 24, 28
sPf = 4
s_pf = 3
v_pf = 7
s_w, s_rb, s_g, s_a = 32, 33, 34, 35
s_t0, s_t1, s_t2 = 36, 37, 38
s_ones = 39
v_lane, v_t0, v_t1, v_t2, v_t3 = 1, 2, 3, 4, 5
vXd = 8


def interleave(A, mfmas, fillers, lead=0):
    n = len(mfmas)
    k = 0
    for _ in range(lead):
        if k < len(fillers):
            A(fillers[k]); k += 1
    rest = len(fillers) - k
    done = 0
    for j, m in enumerate(mfmas):
        A(m)
        want = (rest * (j + 1) + n - 1) // n
        while done < want:
            A(fillers[k]); k += 1; done += 1


def stats_finalize(vS, vQ, vmu, vk1, vk3, vci, vrs, t0, t1):
    return f"""
    v_mov_b32 v{t0}, v{vS}
    v_mov_b32 v{t1}, v{vQ}
    s_nop 1
    v_permlane32_swap_b32 v{vS}, v{t0}
    v_permlane32_swap_b32 v{vQ}, v{t1}
    v_add_f32 v{vS}, v{vS}, v{t0}
    v_add_f32 v{vQ}, v{vQ}, v{t1}
    v_mul_f32 v{vS}, {hex(f2u(-1.0/512))}, v{vS}
    v_mul_f32 v{vQ}, {hex(f2u(1.0/512))}, v{vQ}
    v_cvt_pk_bf16_f32 v{vmu}, v{vS}, v{vS}
    v_fma_f32 v{vQ}, -v{vS}, v{vS}, v{vQ}
    v_max_f32 v{vQ}, 0, v{vQ}
    v_cvt_pk_bf16_f32 v{vQ}, v{vQ}, v{vQ}
    v_and_b32 v{vQ}, 0xffff0000, v{vQ}
    v_add_f32 v{vQ}, {hex(f2u(1e-5))}, v{vQ}
    v_cvt_pk_bf16_f32 v{vQ}, v{vQ}, v{vQ}
    v_and_b32 v{vQ}, 0xffff0000, v{vQ}
    v_sqrt_f32 v{vQ}, v{vQ}
    s_nop 0
    v_cvt_pk_bf16_f32 v{vQ}, v{vQ}, v{vQ}
    v_and_b32 v{vQ}, 0xffff0000, v{vQ}
    v_rcp_f32 v{vrs}, v{vQ}
    v_mul_f32 v{vci}, v{vQ}, v{vQ}
    v_mul_f32 v{vk1}, {hex(f2u(-GC))}, v{vrs}
    v_mul_f32 v{t0}, v{vrs}, v{vrs}
    v_mul_f32 v{t0}, {hex(f2u(0.044715))}, v{t0}
    v_mul_f32 v{vk3}, v{vk1}, v{t0}
    v_mov_b32 v{vk1+1}, v{vk1}
    v_mov_b32 v{vk3+1}, v{vk3}
    v_mov_b32 v{vci+1}, v{vci}
""".strip().split('\n')


def make_sel(A, vsel, t):
    A(f"""
    v_and_b32 v{t}, 31, v{v_lane}
    v_mov_b32 v{vsel+1}, s{s_ones}
    v_cmp_eq_u32 vcc, 0, v{t}
    v_cmp_eq_u32 s[62:63], 20, v{t}
    s_nop 0
    s_or_b64 vcc, vcc, s[62:63]
    s_nop 1
    v_cndmask_b32 v{vsel}, 0, v{vsel+1}, vcc
    v_mov_b32 v{vsel+1}, v{vsel}
    v_mov_b32 v{vsel+2}, v{vsel}
    v_mov_b32 v{vsel+3}, v{vsel}
""")


def split_hilo(dst, src, t):
    return [f"v_cvt_pk_bf16_f32 v{t}, v{src}, v{src}",
            f"v_and_b32 v{t}, 0xffff0000, v{t}",
            f"v_sub_f32 v{t}, v{src}, v{t}",
            f"v_cvt_pk_bf16_f32 v{dst}, v{src}, v{t}"]


def spread(A, slots, fillers):
    n = len(slots)
    k = 0
    for j, m in enumerate(slots):
        A(m)
        want = (len(fillers) * (j + 1) + n - 1) // n
        while k < want:
            A(fillers[k]); k += 1


def gelu_unit(acc, tmp, out, vk1, vk3, vci):
    L = []
    for k in range(0, 8, 2):
        L.append(f"v_pk_mul_f32 {vr(tmp+k,2)}, {vr(acc+k,2)}, {vr(acc+k,2)}")
    for k in range(0, 8, 2):
        L.append(f"v_pk_fma_f32 {vr(tmp+k,2)}, {vr(tmp+k,2)}, {vr(vk3,2)}, {vr(vk1,2)}")
    for k in range(0, 8, 2):
        L.append(f"v_pk_mul_f32 {vr(tmp+k,2)}, {vr(tmp+k,2)}, {vr(acc+k,2)}")
    for k in range(8):
        L.append(f"v_exp_f32 v{tmp+k}, v{tmp+k}")
    for k in range(0, 8, 2):
        L.append(f"v_pk_mul_f32 {vr(acc+k,2)}, {vr(acc+k,2)}, {vr(acc+8+k,2)}")
    for k in range(0, 8, 2):
        L.append(f"v_pk_fma_f32 {vr(tmp+k,2)}, {vr(tmp+k,2)}, {vr(vci,2)}, {vr(vci,2)}")
    for k in range(8):
        L.append(f"v_rcp_f32 v{tmp+k}, v{tmp+k}")
    L.append("s_nop 0")
    for k in range(0, 8, 2):
        L.append(f"v_pk_mul_f32 {vr(acc+k,2)}, {vr(acc+k,2)}, {vr(tmp+k,2)}")
    for k in range(4):
        L.append(f"v_cvt_pk_bf16_f32 v{out+k}, v{acc+2*k}, v{acc+2*k+1}")
    return L


def pf_setup(A, opt):
    if not opt.get('k2_pf', 1):
        return
    A(f"""
    s_lshr_b32 s{s_t0}, s2, 3                   ; jj
    s_and_b32 s{s_t1}, s2, 1
    s_lshl_b32 s{s_t1}, s{s_t1}, 9
    s_mov_b32 s{sPf+3}, 0x20000
    v_and_b32 v{v_t3}, 3, v0
    v_lshlrev_b32 v{v_t3}, 7, v{v_t3}
    s_cmp_eq_u32 s{s_w}, 3
    s_cbranch_scc1 K1_pfx{pf_setup.n}
    s_mov_b32 s{sPf+2}, {1376*1024}
    s_mul_i32 s{s_pf}, s{s_t0}, {43*1024}
    s_add_u32 s{s_pf}, s{s_pf}, s{s_t1}
    v_lshrrev_b32 v{v_t2}, 2, v0
    v_lshl_add_u32 v{v_pf}, v{v_t2}, 10, v{v_t3}
    v_cmp_gt_u32 vcc, 43, v{v_t2}
    v_mov_b32 v{v_t2}, 0x40000000
    s_nop 0
    v_cndmask_b32 v{v_pf}, v{v_t2}, v{v_pf}, vcc
    s_branch K1_pfy{pf_setup.n}
K1_pfx{pf_setup.n}:
    s_mov_b32 s{sPf}, s{sX}
    s_mov_b32 s{sPf+1}, s{sX+1}
    s_mov_b32 s{sPf+2}, {2048*1024}
    s_lshl_b32 s{s_pf}, s{s_t0}, 16
    s_add_u32 s{s_pf}, s{s_pf}, s{s_t1}
    s_and_b32 s{s_t1}, s2, 6
    s_lshl_b32 s{s_t1}, s{s_t1}, 12
    s_add_u32 s{s_pf}, s{s_pf}, s{s_t1}
    v_bfe_u32 v{v_t2}, v{v_lane}, 2, 3
    v_lshl_add_u32 v{v_pf}, v{v_t2}, 10, v{v_t3}
    v_lshrrev_b32 v{v_t2}, 5, v{v_lane}
    v_lshl_add_u32 v{v_pf}, v{v_t2}, 15, v{v_pf}
K1_pfy{pf_setup.n}:
""")
    pf_setup.n += 1


pf_setup.n = 0


sPq = 92
s_pq, s_pqd = 96, 97
v_pq = 15


def k1_pf_setup(A, opt):
    if not opt.get('k1_pf', 1):
        return
    G = opt.get('k1_pfg', 2)
    A(f"""
    s_lshr_b32 s{s_t0}, s2, 3                   ; jj
    v_lshrrev_b32 v{v_t2}, 4, v{v_lane}
    s_mov_b32 s{sPq+3}, 0x20000
    s_cmp_ge_u32 s{s_w}, 2
    s_cbranch_scc1 K1_pqw{pf_setup.n}
    s_mov_b32 s{sPq}, s{sX}
    s_mov_b32 s{sPq+1}, s{sX+1}
    s_mov_b32 s{sPq+2}, {2048*1024}
    s_lshl_b32 s{s_pq}, s{s_t0}, 16
    s_and_b32 s{s_t1}, s2, 1
    s_lshl_b32 s{s_t1}, s{s_t1}, 1
    s_add_u32 s{s_t1}, s{s_t1}, s{s_w}
    s_lshl_b32 s{s_t1}, s{s_t1}, 14
    s_add_u32 s{s_pq}, s{s_pq}, s{s_t1}
    s_add_u32 s{s_pq}, s{s_pq}, 128
    s_mov_b32 s{s_pqd}, {128*G}
    v_and_b32 v{v_t3}, 15, v{v_lane}
    v_lshlrev_b32 v{v_t3}, 10, v{v_t3}
    v_lshl_add_u32 v{v_pq}, v{v_t2}, 7, v{v_t3}
    s_branch K1_pqe{pf_setup.n}
K1_pqw{pf_setup.n}:
    s_cmp_eq_u32 s{s_w}, 2
    s_cselect_b32 s{sPq}, s{sWg}, s{sWu}
    s_cselect_b32 s{sPq+1}, s{sWg+1}, s{sWu+1}
    s_mov_b32 s{sPq+2}, {512*2752}
    s_mul_i32 s{s_pq}, s{s_t0}, {2*2752}
    s_bfe_u32 s{s_t1}, s2, 0x20001
    s_mul_i32 s{s_t1}, s{s_t1}, 768
    s_add_u32 s{s_pq}, s{s_pq}, s{s_t1}
    s_add_u32 s{s_pq}, s{s_pq}, {64*2752}
    s_mov_b32 s{s_pqd}, {64*2752*G}
    v_and_b32 v{v_t3}, 7, v{v_lane}
    v_lshlrev_b32 v{v_t3}, 7, v{v_t3}
    v_min_u32 v{v_t3}, 764, v{v_t3}
    v_lshlrev_b32 v{v_pq}, 6, v{v_t2}
    v_bfe_u32 v{v_t1}, v{v_lane}, 3, 1
    v_add_u32 v{v_pq}, v{v_pq}, v{v_t1}
    v_mul_u32_u24 v{v_pq}, 2752, v{v_pq}
    v_add_u32 v{v_pq}, v{v_pq}, v{v_t3}
K1_pqe{pf_setup.n}:
    v_cmp_gt_u32 vcc, {G}, v{v_t2}
    s_nop 1
    v_cndmask_b32 v{v_pq}, -1, v{v_pq}, vcc
""")


def k1_pf_load(dst):
    return f"buffer_load_dword {dst}, v{v_pq}, {sr(sPq,4)}, s{s_pq} offen\ns_add_u32 s{s_pq}, s{s_pq}, s{s_pqd}"


def pf_load():
    return f"buffer_load_dword v{v_pf}, v{v_pf}, {sr(sPf,4)}, s{s_pf} offen"


def gen_k1(A, opt):
    pf_setup.n = 0
    st_aux = opt.get('h_store_aux', '')
    A(f"""
k1_kernel:
    s_cmp_ge_u32 s2, 256
    s_cbranch_scc1 K1_end
    s_load_dwordx2 {sr(sX,2)}, s[0:1], 0
    s_load_dwordx2 {sr(sWg,2)}, s[0:1], 48
    s_load_dwordx2 {sr(sWu,2)}, s[0:1], 56
    s_load_dwordx2 {sr(sWs,2)}, s[0:1], 88
    s_load_dwordx2 {sr(sHr,2)}, s[0:1], 24
    s_load_dwordx2 {sr(sHi,2)}, s[0:1], 32
    s_load_dwordx2 {sr(sPf,2)}, s[0:1], 64
""")
    if opt.get('stamps'):
        A("s_memrealtime s[66:67]")
    stamp(A, opt, 0)
    if opt.get('code_pf', 1):
        A(f"""
    s_getpc_b64 s[{s_t0}:{s_t0+1}]
    v_lshlrev_b32 v6, 7, v0
    s_bfe_u32 s{s_t2}, s2, 0x20003
    s_cmp_lg_u32 s{s_t2}, 0
    s_cbranch_scc1 K1_nopf
    global_load_dword v6, v6, s[{s_t0}:{s_t0+1}]
K1_nopf:
""")
    A(f"""
    v_lshrrev_b32 v{v_t0}, 6, v0
    v_and_b32 v{v_lane}, 63, v0
    s_mov_b32 s{sX+2}, {2048*1024}
    s_mov_b32 s{sX+3}, 0x20000
    v_readfirstlane_b32 s{s_w}, v{v_t0}
    s_mov_b32 s{sWg+2}, {512*2752}
    s_mov_b32 s{sWg+3}, 0x20000
    s_mov_b32 s{sWu+2}, {512*2752}
    s_mov_b32 s{sWu+3}, 0x20000
    s_lshr_b32 s{s_t0}, s2, 3
    s_and_b32 s{s_rb}, s{s_t0}, 7
    s_lshr_b32 s{s_g}, s{s_t0}, 3
    s_and_b32 s{s_t0}, s2, 1
    s_lshl_b32 s{s_t0}, s{s_t0}, 3
    s_add_u32 s{s_rb}, s{s_rb}, s{s_t0}
    s_and_b32 s{s_t0}, s2, 6
    s_lshl_b32 s{s_t0}, s{s_t0}, 1
    s_add_u32 s{s_g}, s{s_g}, s{s_t0}
    s_lshl_b32 s{s_a}, s{s_rb}, 2
    s_add_u32 s{s_a}, s{s_a}, s{s_w}
    v_lshrrev_b32 v{v_t0}, 3, v{v_lane}
    v_and_b32 v{v_t1}, 7, v{v_lane}
    v_lshrrev_b32 v{v_t2}, 4, v{v_lane}
    v_xor_b32 v{v_t1}, v{v_t1}, v{v_t2}
    v_lshlrev_b32 v{v_t1}, 4, v{v_t1}
    v_lshl_add_u32 v{vXd}, v{v_t0}, 16, v{v_t1}
    v_xor_b32 v{vXd+1}, 64, v{vXd}
    v_add_u32 v{vXd+2}, {2*(8*65536-1024)}, v{vXd}
    v_add_u32 v{vXd+3}, {3*(8*65536-1024)}, v{vXd+1}
    v_add_u32 v{vXd+1}, {8*65536-1024}, v{vXd+1}
    s_mov_b32 s{s_ones}, 0x3f803f80
    s_cmp_ge_u32 s{s_g}, 14
    s_cbranch_scc1 K1_dft
""")
    lds_f = gen_ffn(A, opt, st_aux)
    lds_d = gen_dft(A, opt, st_aux)
    A("K1_end:")
    A("s_endpgm")
    return max(lds_f, lds_d), 404, 256


def gen_ffn(A, opt, st_aux):
    SLOT = 41024
    WIMG = 16384
    UPO = 12320
    EXC = 3 * SLOT
    lds = EXC + 8192
    s_xo, s_wo = 40, 48
    s_mx, s_mg, s_mu, s_ho, s_h1 = 56, 57, 58, 59, 60
    s_ck = 61
    vWd = 12
    vXr = 16
    vWr = 20
    vS, vQ = 24, 26
    vTm = 28
    vSel = 32
    vXf = 36
    vWf = 68
    vC = 92
    acc = 104
    rot = opt.get('k1_rot', 0)

    A(f"s_mul_i32 s{s_t0}, s{s_w}, 192")
    A(f"s_mov_b32 s{s_t1}, 0x15555556")
    for i in range(3):
        A(f"""
    s_add_u32 s{s_t2}, s{s_t0}, {64*i}
    v_add_u32 v{v_t2}, s{s_t2}, v{v_lane}
    v_mul_hi_u32 v{v_t3}, v{v_t2}, s{s_t1}
    v_lshlrev_b32 v{v_t2}, 4, v{v_t2}
    v_mul_u32_u24 v{v_t3}, {2752-192}, v{v_t3}
    v_add_u32 v{vWd+i}, v{v_t2}, v{v_t3}
""")
        if i:
            A(f"v_subrev_u32 v{vWd+i}, {1024*i}, v{vWd+i}")
    if rot == 8:
        A(f"s_lshl_b32 s{s_ck}, s{s_g}, 1\ns_add_u32 s{s_ck}, s{s_ck}, s{s_rb}")
    elif rot == 4:
        A(f"s_add_u32 s{s_ck}, s{s_g}, s{s_rb}\ns_lshl_b32 s{s_ck}, s{s_ck}, 1")
    elif rot == 2:
        A(f"s_add_u32 s{s_ck}, s{s_g}, s{s_rb}\ns_lshl_b32 s{s_ck}, s{s_ck}, 2")
    elif rot in (7, 6):
        A(f"s_lshl_b32 s{s_ck}, s{s_g}, 1\ns_add_u32 s{s_ck}, s{s_ck}, s{s_rb}\ns_mul_i32 s{s_t0}, s{s_ck}, {(65536 + rot - 1) // rot}\n"
          f"s_lshr_b32 s{s_t0}, s{s_t0}, 16\ns_mul_i32 s{s_t0}, s{s_t0}, {rot}\ns_sub_u32 s{s_ck}, s{s_ck}, s{s_t0}")
    A(f"""
    s_lshl_b32 s{s_ho}, s{s_a}, 10
    s_mul_i32 s{s_h1}, s{s_g}, 192
    s_lshl_b32 s{s_mx}, s{s_w}, 12
    s_mul_i32 s{s_mg}, s{s_w}, 3072
    s_add_u32 s{s_mu}, s{s_mg}, {WIMG+UPO}
    s_add_u32 s{s_mg}, s{s_mg}, {WIMG}
""")

    def offs(c):
        if rot in (7, 6) and c >= 8 - rot:
            return [f"s_add_u32 s{s_t0}, s{s_ck}, {8-rot}",
                    f"s_lshl_b32 s{s_xo+c}, s{s_t0}, 7", f"s_add_u32 s{s_xo+c}, s{s_xo+c}, s{s_ho}",
                    f"s_mul_i32 s{s_wo+c}, s{s_t0}, {64*2752}", f"s_add_u32 s{s_wo+c}, s{s_wo+c}, s{s_h1}",
                    f"s_add_u32 s{s_ck}, s{s_ck}, 1", f"s_cmp_eq_u32 s{s_ck}, {rot}", f"s_cselect_b32 s{s_ck}, 0, s{s_ck}"]
        if rot in (2, 4, 8):
            return [f"s_add_u32 s{s_t0}, s{s_ck}, {c}", f"s_and_b32 s{s_t0}, s{s_t0}, 7",
                    f"s_lshl_b32 s{s_xo+c}, s{s_t0}, 7", f"s_add_u32 s{s_xo+c}, s{s_xo+c}, s{s_ho}",
                    f"s_mul_i32 s{s_wo+c}, s{s_t0}, {64*2752}", f"s_add_u32 s{s_wo+c}, s{s_wo+c}, s{s_h1}"]
        return [f"s_add_u32 s{s_xo+c}, s{s_ho}, {128*c}", f"s_add_u32 s{s_wo+c}, s{s_h1}, {64*2752*c}"]

    def dma_list(c, nop=False):
        slot = (c % 3) * SLOT
        L = []
        for srd, m, v, n, so in ((sX, s_mx, vXd, 4, s_xo + c), (sWg, s_mg, vWd, 3, s_wo + c), (sWu, s_mu, vWd, 3, s_wo + c)):
            L.append(f"s_add_u32 m0, s{m}, {slot}" + ("\ns_nop 0" if nop else ""))
            for i in range(n):
                off = f" offset:{1024*i}" if i else ""
                L.append(f"buffer_load_dwordx4 v{v+i}, {sr(srd,4)}, s{so} offen{off} lds")
        return L

    for x in offs(0):
        A(x)
    A("s_waitcnt lgkmcnt(0)")
    stamp(A, opt, 1)
    vm0 = ['c0'] * 10
    for x in dma_list(0, True):
        A(x)
    G = opt.get('k1_pfg', 2)
    npq = (7 + G - 1) // G if opt.get('k1_pf', 1) else 0
    if npq:
        k1_pf_setup(A, opt)
        A(k1_pf_load('v6'))
        vm0.append('p')
    for x in offs(1) + dma_list(1, True):
        A(x)
    vm0 += ['c1'] * 10
    for c in range(2, 8):
        for x in offs(c):
            A(x)
    A(f"""
    s_mov_b32 s{sWs+2}, {WS_USED}
    s_mov_b32 s{sWs+3}, 0x20000
    v_and_b32 v{v_t0}, 31, v{v_lane}            ; r
    v_lshrrev_b32 v{v_t1}, 5, v{v_lane}         ; h
    v_bfe_u32 v{v_t2}, v{v_lane}, 1, 3          ; (r>>1)&7
    v_xor_b32 v{v_t2}, v{v_t2}, v{v_t1}
    v_lshlrev_b32 v{v_t2}, 4, v{v_t2}
    v_lshl_add_u32 v{v_t2}, v{v_t0}, 7, v{v_t2}
    s_lshr_b32 s{s_t0}, s{s_w}, 1
    s_lshl_b32 s{s_t0}, s{s_t0}, 13
    s_lshl_b32 s{s_t1}, s{s_w}, 5
    s_add_u32 s{s_t0}, s{s_t0}, s{s_t1}
    v_xor_b32 v{vXr}, s{s_t0}, v{v_t2}
    v_xor_b32 v{vXr+1}, 32, v{vXr}
    v_xor_b32 v{vXr+2}, 64, v{vXr}
    v_xor_b32 v{vXr+3}, 96, v{vXr}
    v_bfe_u32 v{v_t0}, v{v_lane}, 2, 2
    v_lshl_add_u32 v{v_t0}, v{v_t1}, 3, v{v_t0}
    v_mul_u32_u24 v{v_t0}, 192, v{v_t0}
    v_and_b32 v{v_t2}, 3, v{v_lane}
    v_lshl_add_u32 v{v_t0}, v{v_t2}, 3, v{v_t0}
    v_bfe_u32 v{v_t2}, v{v_lane}, 4, 1
    v_mul_u32_u24 v{v_t2}, {UPO}, v{v_t2}
    v_add_u32 v{v_t0}, v{v_t0}, v{v_t2}
    s_and_b32 s{s_t1}, s{s_w}, 1
    s_mul_i32 s{s_t1}, s{s_t1}, 96
    s_add_u32 s{s_t1}, s{s_t1}, {WIMG}
""")
    for s in range(4):
        A(f"s_xor_b32 s{s_t0}, s{s_w}, {s}\ns_mul_i32 s{s_t0}, s{s_t0}, 3072\ns_add_u32 s{s_t0}, s{s_t0}, s{s_t1}")
        A(f"v_add_u32 v{vWr+s}, s{s_t0}, v{v_t0}")
    vB2 = 248
    for k in range(8):
        A(f"v_add_u32 v{vB2+k}, {2*SLOT}, v{vXr+k}")
    make_sel(A, vSel, v_t2)
    pf_setup(A, opt)
    for r in range(vS, vS + 4):
        A(f"v_mov_b32 v{r}, 0")
    A(f"""
    s_and_b32 s{s_t0}, s{s_a}, -2
    s_mul_i32 s{s_ho}, s{s_t0}, 86
    s_mul_i32 s{s_t0}, s{s_g}, 6
    s_add_u32 s{s_ho}, s{s_ho}, s{s_t0}
    s_and_b32 s{s_t0}, s{s_w}, 1
    s_mul_i32 s{s_t0}, s{s_t0}, 3
    s_add_u32 s{s_ho}, s{s_ho}, s{s_t0}
    s_lshl_b32 s{s_ho}, s{s_ho}, 10
    s_add_u32 s{s_h1}, s{s_ho}, {86*1024}
""")

    def slot_of(n):
        sl = (n >> 2) % 3
        return (vB2 - vXr, 0) if sl == 2 else (0, sl * SLOT)

    def rd_x(n, t):
        d, o = slot_of(n)
        return f"ds_read_b128 {vr(vXf+8*(n&3)+4*t,4)}, v{vXr+d+(n&3)} offset:{o+4096*t}"

    def rd_w(n, j, p):
        d, o = slot_of(n)
        return f"ds_read_b64_tr_b16 {vr(vWf+12*(n&1)+4*j+2*p,2)}, v{vWr+d+(n&3)} offset:{o+768*p+32*j}"

    def stat_ops(n, t):
        L = []
        for k in range(4):
            x = vXf + 8 * (n & 3) + 4 * t + k
            a = vTm + 2 * (k & 1)
            L += [f"v_lshlrev_b32 v{a}, 16, v{x}", f"v_and_b32 v{a+1}, 0xffff0000, v{x}",
                  f"v_fmac_f32 v{vQ+t}, v{a}, v{a}", f"v_fmac_f32 v{vQ+t}, v{a+1}, v{a+1}"]
        return L

    def mfma(n, j, t):
        d = acc + 16 * (2 * j + t)
        c = '0' if n == 0 else vr(d, 16)
        return f"v_mfma_f32_32x32x16_bf16 {vr(d,16)}, {vr(vWf+12*(n&1)+4*j,4)}, {vr(vXf+8*(n&3)+4*t,4)}, {c}"

    def cs_mfma(n, j):
        c = '0' if n == 0 else vr(vC + 4 * j, 4)
        return f"v_mfma_f32_16x16x32_bf16 {vr(vC+4*j,4)}, {vr(vSel,4)}, {vr(vWf+12*(n&1)+4*j,4)}, {c}"

    vR = 240

    def rs_mfma(n):
        t = n & 1
        c = '0' if n < 2 else vr(vR + 4 * t, 4)
        return f"v_mfma_f32_16x16x32_bf16 {vr(vR+4*t,4)}, {vr(vSel,4)}, {vr(vXf+8*((n-t)&3)+4*t,4)}, {c}"

    P = sched.Prog()
    P.wait(vm=['c0'])
    P.i("s_barrier")
    if opt.get('stamps'):
        P.i("s_memtime s[74:75]")

    def rtags(n):
        return [(f'x{n}_0', rd_x(n, 0)), (f'w{n}_0', rd_w(n, 0, 0)), (f'w{n}_0', rd_w(n, 0, 1)), (f'x{n}_1', rd_x(n, 1)),
                (f'w{n}_1', rd_w(n, 1, 0)), (f'w{n}_1', rd_w(n, 1, 1)), (f'w{n}_2', rd_w(n, 2, 0)), (f'w{n}_2', rd_w(n, 2, 1))]
    for tag, t in rtags(0):
        P.ds(tag, t)
    anchors = []
    first = {}
    barpos = opt.get('k1_barpos', 1)
    bar_at = {}
    for n in range(32):
        c, s = n >> 2, n & 3
        first[n] = len(anchors)
        for g in range(6):
            j, t = g >> 1, g & 1
            a = dict(text=mfma(n, j, t), cap=25)
            if s == 3 and c < 7 and g == barpos:
                def pre(P, c=c):
                    P.wait(lg='all', vm=[f'c{c+1}'] if not (opt.get('x_nodma') and c >= 1) else None)
                    if not opt.get('x_nobar'):
                        P.i("s_barrier")
                    if opt.get('stamps') == 2:
                        P.i(f"s_memtime s[{76+2*c}:{77+2*c}]")
                    elif c == 6 and opt.get('stamps'):
                        P.i("s_memtime s[76:77]")
                a.update(pre=pre, precost=10)
                bar_at[c] = len(anchors)
            elif g == 0:
                a.update(pre=lambda P, n=n: P.wait(lg=[f'x{n}_0', f'w{n}_0', f'x{n}_1', f'w{n}_1']), precost=5)
            elif g == 4 and not (s == 3 and c < 7 and barpos < 4):
                a.update(pre=lambda P, n=n: P.wait(lg=[f'w{n}_2']), precost=5)
            anchors.append(a)
            if s < 2 and t == 1:
                anchors.append(dict(text=cs_mfma(n, j), cap=8))
            if g == (2 if s < 2 else 3):
                anchors.append(dict(text=rs_mfma(n), cap=8))
    first[32] = len(anchors)
    last = lambda n: first[n + 1] - 1
    st_rd, st_va, st_dm = [], [], []
    for n in range(31):
        e = bar_at[n >> 2] if (n & 3) == 3 else first[n]
        dls = [1, 2, 2, 3, 4, 4, 99, 99]
        for (tag, t), dl in zip(rtags(n + 1), dls):
            st_rd.append(('ds', tag, t, e, min(max(first[n] + dl, e + (dl + 1) // 2), last(n))))
    for n in range(0, 32, 2):
        ops = stat_ops(n, 0) + stat_ops(n, 1)
        if opt.get('x_nostats'):
            ops = []
        lo, hi = first[n], last(min(n + 2, 31))
        for k, t in enumerate(ops):
            st_va.append(('i', None, t, lo, lo + (hi - lo) * (k + 1) // len(ops)))
    lead = opt.get('k1_lead', 0)
    span = opt.get('k1_span', 26)
    for q in range(2, 8):
        L = dma_list(q)
        e0 = (bar_at[q - 3] if q >= 3 else 0) + lead
        items = []
        for t in L:
            if t.startswith('s_add'):
                items.append(('i', None, t))
            else:
                items.append(('vm', f'c{q}', t))
        for m in range(1, npq):
            if max(2, G * m + opt.get('k1_pfo', -1)) == q:
                ld, inc = k1_pf_load('v6').split('\n')
                st_dm.append(('vm', 'p', ld, e0, e0 + 1))
                st_dm.append(('i', None, inc + ' ', e0, e0 + 2))
        k = 0
        for kind, tag, t in items:
            e = e0 + span * k // 10
            if kind == 'i':
                st_dm.append((kind, tag, t, max(e - 1, e0), e + 1))
            else:
                prev_m0 = st_dm and ' m0,' in st_dm[-1][2]
                st_dm.append((kind, tag, ("s_nop 0 ;m0\n" if prev_m0 else "") + t, e, e + 3, opt.get('k1_vmcost', 8)))
                k += 1
        if q == opt.get('k2_pf_q', 7) and opt.get('k2_pf', 1):
            st_dm.append(('vm', 'pf', pf_load(), e0 + span, e0 + span + 3))
    if opt.get('x_nodma'):
        st_dm = []
    if opt.get('x_oob'):
        A(f's_mov_b32 s{sX+2}, 0\ns_mov_b32 s{sWg+2}, 0\ns_mov_b32 s{sWu+2}, 0')
    over = sched.place(P, anchors, [st_rd, st_dm, st_va], slack=opt.get('k1_slack', 0))
    P.emit(A, vm0=vm0)
    if opt.get('stamps') == 1: stamp(A, opt, 4)
    vE = vXf
    A(f"""
    v_lshlrev_b32 v{v_t0}, 4, v{v_lane}
    s_lshl_b32 s{s_t0}, s{s_w}, 11
    s_add_u32 s{s_t0}, s{s_t0}, {EXC}
    v_add_u32 v{v_t1}, s{s_t0}, v{v_t0}
    v_mov_b32 v{vC+1}, v{vC+4}
    v_mov_b32 v{vC+2}, v{vC+8}
    v_mov_b32 v{vS}, v{vR}
    v_mov_b32 v{vS+1}, v{vR+4}
    ds_write_b128 v{v_t1}, {vr(vS,4)}
    ds_write_b128 v{v_t1}, {vr(vC,4)} offset:1024
    v_xor_b32 v{v_t2}, {2048}, v{v_t1}
    v_xor_b32 v{v_t3}, {4096}, v{v_t1}
""")
    vmu = [vE + 8, vE + 12]
    for t in range(2):
        for k in range(1, 4):
            A(f"v_mov_b32 v{vmu[t]+k}, 0")
    A(f"""
    s_waitcnt lgkmcnt(0)
    s_barrier
    ds_read_b128 {vr(vE,4)}, v{v_t2}
    ds_read_b128 {vr(vE+4,4)}, v{v_t3} offset:1024
    s_waitcnt lgkmcnt(1)
    v_pk_add_f32 {vr(vS,2)}, {vr(vS,2)}, {vr(vE,2)}
    v_pk_add_f32 {vr(vQ,2)}, {vr(vQ,2)}, {vr(vE+2,2)}
""")
    vk1, vk3, vci, vrs = [200, 208], [202, 210], [204, 212], [206, 214]
    f0 = stats_finalize(vS, vQ, vmu[0], vk1[0], vk3[0], vci[0], vrs[0], vTm, vTm + 1)
    f1 = stats_finalize(vS + 1, vQ + 1, vmu[1], vk1[1], vk3[1], vci[1], vrs[1], vTm + 2, vTm + 3)
    for a, b in zip(f0, f1):
        if a.strip().startswith('s_nop'):
            if 's_nop 1' in a:
                A("s_nop 0")
            continue
        A(a); A(b)
    A("s_waitcnt lgkmcnt(0)")
    for j in range(3):
        A(f"v_add_f32 v{vC+j}, v{vC+j}, v{vE+4+j}")
    for j in range(3):
        for x in split_hilo(vWf + 4 * j, vC + j, vTm):
            A(x)
    A("s_nop 1")
    for j in range(3):
        for t in range(2):
            d = acc + 16 * (2 * j + t)
            A(f"v_mfma_f32_32x32x16_bf16 {vr(d,16)}, {vr(vWf+4*j,4)}, {vr(vmu[t],4)}, {vr(d,16)}")
    A("s_nop 7")
    if opt.get('stamps') == 1: stamp(A, opt, 5)
    k = 0
    for j in range(3):
        for t in range(2):
            tmp = vXf + 16 + 8 * (k & 1)
            out = 216 + 4 * k
            for x in gelu_unit(acc + 16 * (2 * j + t), tmp, out, vk1[t], vk3[t], vci[t]):
                A(x)
            A(f"buffer_store_dwordx4 {vr(out,4)}, v{v_t0}, {sr(sWs,4)}, s{s_h1 if t else s_ho} offen offset:{1024*j} {st_aux}")
            k += 1
    if opt.get('stamps'):
        if opt.get('stamps') == 2:
            stamp(A, opt, 10)
            emit_stamp_store(A, 11, sWs, 0x1000000, s_w, v_lane)
        else:
            stamp(A, opt, 6)
            A("s_waitcnt vmcnt(0)")
            stamp(A, opt, 7)
            emit_stamp_store(A, 8, sWs, 0x1000000, s_w, v_lane)
    A("s_endpgm")
    return lds


def gen_dft(A, opt, st_aux):
    global v_pq
    XS = 32768
    H0 = 65536
    WL = H0 + 32768
    SC = H0 + 65536
    lds = H0 + 3 * 32768
    t_aux = opt.get('t_store_aux', st_aux)
    s_par, s_xo, s_ho, s_mx, s_mh = 40, 41, 42, 43, 44
    s_sig = 46
    s_wo, s_mw = 48, 49
    s_neg, s_so = 50, 51
    vHd = 12
    vRx = 16
    vRb = 20
    vQ = 24
    vWl = 26
    vSel = 28
    vXb = 32
    vF = 48
    vT = 56
    vB = 64
    acc = 128
    aS = 128
    aC = 132
    v_pq_save = v_pq
    v_pq = 0

    A("K1_dft:")
    A(f"""
    s_sub_u32 s{s_par}, s{s_g}, 14
    s_mov_b32 s{sHr+2}, {512*1024}
    s_mov_b32 s{sHr+3}, 0x20000
    s_mov_b32 s{sHi+2}, {512*1024}
    s_mov_b32 s{sHi+3}, 0x20000
    s_lshl_b32 s{s_t0}, s{s_w}, 6
    s_add_u32 s{s_t0}, s{s_t0}, s{s_par}
    v_lshlrev_b32 v{v_t2}, 1, v{v_t0}
    v_add_u32 v{v_t2}, s{s_t0}, v{v_t2}
    v_lshl_add_u32 v{vHd+2}, v{v_t2}, 10, v{v_t1}
    v_cmp_eq_u32 vcc, 0, v{v_t2}
    v_xor_b32 v{vHd+1}, 64, v{vHd+2}
    v_add_u32 v{v_t3}, {256*1024}, v{vHd+2}
    v_cndmask_b32 v{vHd}, v{vHd+2}, v{v_t3}, vcc
    v_add_u32 v{vHd+3}, {45*1024}, v{vHd+1}
    v_add_u32 v{vHd+1}, {15*1024}, v{vHd+1}
    v_add_u32 v{vHd+2}, {30*1024}, v{vHd+2}
    s_lshl_b32 s{s_xo}, s{s_a}, 10
    s_lshl_b32 s{s_mx}, s{s_w}, 12
    s_lshl_b32 s{s_mh}, s{s_w}, 13
    s_add_u32 s{s_mh}, s{s_mh}, {H0}
""")

    def dma_x(s):
        L = []
        slot = (s & 1) * XS
        for half in range(2):
            L.append(f"s_add_u32 m0, s{s_mx}, {slot+half*16384}\ns_add_u32 s{s_t2}, s{s_xo}, {128*(s+4*half)}\n"
                     f"buffer_load_dwordx4 v{vXd}, {sr(sX,4)}, s{s_t2} offen lds")
            for i in range(1, 4):
                L.append(f"buffer_load_dwordx4 v{vXd+i}, {sr(sX,4)}, s{s_t2} offen offset:{1024*i} lds")
        return L

    def dma_h(s):
        L = []
        slot = (s % 3) * 32768
        for mat, srd in enumerate((sHr, sHi)):
            L.append(f"s_add_u32 m0, s{s_mh}, {slot+mat*4096}\ns_mov_b32 s{s_ho}, {128*s}\n"
                     f"buffer_load_dwordx4 v{vHd}, {sr(srd,4)}, s{s_ho} offen lds")
            for i in range(1, 4):
                L.append(f"buffer_load_dwordx4 v{vHd+i}, {sr(srd,4)}, s{s_ho} offen offset:{1024*i} lds")
        return L

    def dma_w():
        L = []
        for i in range(4):
            for mat, srd in enumerate((sWg, sWu)):
                L.append(f"s_add_u32 m0, s{s_mw}, {mat*16384+1024*i}\ns_add_u32 s{s_t2}, s{s_wo}, {32*2752*i}\n"
                         f"buffer_load_dwordx4 v{vWl+mat}, {sr(srd,4)}, s{s_t2} offen lds")
        return L

    vm0 = []
    A("s_waitcnt lgkmcnt(0)")
    stamp(A, opt, 1)
    for x in dma_x(0): A(x)
    vm0 += ['x0'] * 8
    for x in dma_h(0): A(x)
    vm0 += ['h0'] * 8
    pf_setup(A, opt)
    G = opt.get('k1_pfg', 2)
    npq = (7 + G - 1) // G if opt.get('k1_pf', 1) else 0
    if npq:
        pf_setup.n -= 1
        k1_pf_setup(A, opt)
        pf_setup.n += 1
        A(k1_pf_load('v6'))
        vm0.append('p')
    for x in dma_x(1): A(x)
    vm0 += ['x1'] * 8
    A(f"""
    v_lshrrev_b32 v{v_t0}, 1, v{v_lane}
    v_and_b32 v{v_t1}, 1, v{v_lane}
    v_lshlrev_b32 v{v_t1}, 4, v{v_t1}
    v_mul_u32_u24 v{vWl}, 2752, v{v_t0}
    v_add_u32 v{vWl}, v{vWl}, v{v_t1}
    v_xor_b32 v{v_t0}, 4, v{v_t0}
    v_mul_u32_u24 v{vWl+1}, 2752, v{v_t0}
    v_add_u32 v{vWl+1}, v{vWl+1}, v{v_t1}
    s_mul_i32 s{s_wo}, s{s_w}, {128*2752}
    s_lshl_b32 s{s_t0}, s{s_par}, 5
    s_add_u32 s{s_wo}, s{s_wo}, s{s_t0}
    s_add_u32 s{s_wo}, s{s_wo}, 2688
    s_add_u32 s{s_mw}, s{s_mx}, {WL}
    s_mov_b32 s{sWs+2}, {WS_USED}
    s_mov_b32 s{sWs+3}, 0x20000
    s_cmp_eq_u32 s{s_par}, 0
    s_cselect_b32 s{s_sig}, 1.0, -1.0
    s_mov_b32 s{s_neg}, 0x80008000
    v_and_b32 v{v_t0}, 31, v{v_lane}            ; r
    v_lshrrev_b32 v{v_t1}, 5, v{v_lane}         ; h
    v_bfe_u32 v{v_t2}, v{v_lane}, 1, 3
    v_xor_b32 v{v_t2}, v{v_t2}, v{v_t1}
    v_lshlrev_b32 v{v_t2}, 4, v{v_t2}
    v_lshl_add_u32 v{v_t2}, v{v_t0}, 7, v{v_t2}
    v_add_u32 v{vRx}, s{s_mx}, v{v_t2}
    v_xor_b32 v{vRx+1}, 32, v{vRx}
    v_xor_b32 v{vRx+2}, 64, v{vRx}
    v_xor_b32 v{vRx+3}, 96, v{vRx}
    v_add_u32 v{vRb}, {H0}, v{v_t2}
    v_xor_b32 v{vRb+1}, 32, v{vRb}
    v_xor_b32 v{vRb+2}, 64, v{vRb}
    v_xor_b32 v{vRb+3}, 96, v{vRb}
    v_mov_b32 v{vQ}, 0
    v_mov_b32 v{vQ+1}, 0
""")
    make_sel(A, vSel, v_t2)
    A(f"v_lshlrev_b32 v{v_t2}, 14, v{v_t0}\nv_lshl_add_u32 v{v_t2}, v{v_t1}, 3, v{v_t2}")

    def rd_x(n):
        ks, b, o = n & 3, n & 1, ((n >> 2) & 1) * XS
        return [f"ds_read_b128 {vr(vXb+8*b,4)}, v{vRx+ks} offset:{o}",
                f"ds_read_b128 {vr(vXb+8*b+4,4)}, v{vRx+ks} offset:{o+16384}",
                f"ds_read_b128 {ar(4*n,4)}, v{vRx+ks} offset:{o}",
                f"ds_read_b128 {ar(64+4*n,4)}, v{vRx+ks} offset:{o+16384}"]

    def rd_b(n):
        ks, b, o = n & 3, n & 1, 32768 if (n >> 2) == 1 else 0
        return [f"ds_read_b128 {vr(vB+32*b+4*j,4)}, v{vRb+ks} offset:{o+4096*j}" for j in range(8)]

    def fold(n):
        b = n & 1
        lo, hi, out = vXb + 8 * b, vXb + 8 * b + 4, vF + 4 * b
        L = []
        for k in range(4):
            t = vT + 4 * (k & 1)
            L += [f"v_lshlrev_b32 v{t}, 16, v{lo+k}",
                  f"v_and_b32 v{t+1}, 0xffff0000, v{lo+k}",
                  f"v_lshlrev_b32 v{t+2}, 16, v{hi+k}",
                  f"v_and_b32 v{t+3}, 0xffff0000, v{hi+k}",
                  f"v_fmac_f32 v{vQ}, v{t}, v{t}",
                  f"v_fmac_f32 v{vQ+1}, v{t+1}, v{t+1}",
                  f"v_fmac_f32 v{t}, s{s_sig}, v{t+2}",
                  f"v_fmac_f32 v{t+1}, s{s_sig}, v{t+3}",
                  f"v_fmac_f32 v{vQ}, v{t+2}, v{t+2}",
                  f"v_fmac_f32 v{vQ+1}, v{t+3}, v{t+3}",
                  f"v_cvt_pk_bf16_f32 v{out+k}, v{t}, v{t+1}"]
        return L

    def rowsum(n, half):
        c = '0' if n == 0 and half == 0 else ar(aS, 4)
        return f"v_mfma_f32_16x16x32_bf16 {ar(aS,4)}, {vr(vSel,4)}, {vr(vXb+8*(n&1)+4*half,4)}, {c}"

    P = sched.Prog()
    P.wait(vm=['x0'])
    for n in (0, 1):
        for x in rd_x(n): P.ds(f'x{n}', x)
    P.wait(lg=['x0'])
    P.i(rowsum(0, 0)); P.i(rowsum(0, 1))
    for x in fold(0): P.i(x)
    P.wait(vm=['h0'])
    P.i("s_barrier")
    if opt.get('stamps'):
        P.i("s_memtime s[74:75]")
    for j, x in enumerate(rd_b(0)): P.ds(f'b0_{j>>2}', x)
    anchors, first, bar_at = [], {}, {}
    for n in range(16):
        s, ks, b = n >> 2, n & 3, n & 1
        first[n] = len(anchors)
        for j in range(8):
            c = '0' if n == 0 else vr(acc + 16 * j, 16)
            a = dict(text=f"v_mfma_f32_32x32x16_bf16 {vr(acc+16*j,16)}, {vr(vF+4*b,4)}, {vr(vB+32*b+4*j,4)}, {c}", cap=25)
            if j == 0:
                def pre(P, n=n):
                    vmw = [f'x{(n>>2)+1}'] if (n & 3) == 2 and n < 12 else None
                    P.wait(lg=[f'b{n}_0'] + ([f'x{n+1}'] if n < 15 else []), vm=vmw)
                    P.i("s_nop 0")
                a.update(pre=pre, precost=10)
            elif j == 1 and ks == 3 and s < 3:
                def pre(P, s=s):
                    P.wait(lg='all', vm=[f'h{s+1}'])
                    P.i("s_barrier")
                a.update(pre=pre, precost=10)
                bar_at[s] = len(anchors)
            elif j == 4 and not (ks == 3 and s < 3):
                a.update(pre=lambda P, n=n: P.wait(lg=[f'b{n}_1']), precost=5)
            anchors.append(a)
            if j in (2, 5) and n < 15:
                anchors.append(dict(text=rowsum(n + 1, 0 if j == 2 else 1), cap=8))
    first[16] = len(anchors)
    last = lambda n: first[n + 1] - 1
    st_rd, st_va, st_dm = [], [], []
    for n in range(15):
        e = bar_at[n >> 2] if (n & 3) == 3 else first[n]
        if (n & 3) == 3 and n >= 7:
            d = 65536 if n == 7 else (-65536) & 0xffffffff
            for r in range(4):
                st_rd.append(('i', None, f"v_add_u32 v{vRb+r}, {d}, v{vRb+r}", e - 1 if r else e - 1, e + (r > 0)))
        for j, x in enumerate(rd_b(n + 1)):
            st_rd.append(('ds', f'b{n+1}_{j>>2}', x, e, min(e + 1 + j // 2, last(n))))
        if n + 2 < 16:
            for j, x in enumerate(rd_x(n + 2)):
                st_rd.append(('ds', f'x{n+2}', x, first[n], min(e + 5 + j // 2, last(n))))
        fl = fold(n + 1)
        for k, t in enumerate(fl):
            st_va.append(('i', None, t, first[n], first[n] + (last(n) - 1 - first[n]) * (k + 1) // len(fl)))

    def add_dm(L, tag, lo, hi):
        for k, t in enumerate(L):
            e = lo + (hi - lo) * k // len(L)
            st_dm.append(('vm', tag, t, e, e + 2))
    pq = [k1_pf_load('v6').split('\n') for _ in range(max(0, npq - 1))]

    def add_pq(at):
        if pq:
            ld, inc = pq.pop(0)
            st_dm.append(('vm', 'p', ld, at, at + 2))
            st_dm.append(('i', None, inc, at, at + 3))
    add_dm(dma_h(1), 'h1', 0, first[1] + 2)
    add_pq(first[1] + 2)
    cl = []
    for mat, srd in enumerate((sHr, sHi)):
        for m in range(2):
            for p in range(2):
                cl.append(f"buffer_load_dwordx2 {ar(aC+8*mat+4*m+2*p,2)}, v{v_t2}, {sr(srd,4)}, 0 offen offset:{32*m+16*p}")
    add_dm(dma_x(2), 'x2', first[2], first[3] + 4)
    add_pq(first[3] + 4)
    add_dm(dma_h(2), 'h2', first[3] + 5, first[5])
    add_pq(first[5])
    add_dm(cl, 'c', first[5], first[6])
    add_dm(dma_x(3), 'x3', first[6], first[7] + 4)
    add_dm(dma_h(3), 'h3', first[7] + 5, first[9])
    while pq:
        add_pq(first[9])
    add_dm(dma_w(), 'w', first[9] + 1, first[12])
    if opt.get('k2_pf', 1):
        st_dm.append(('vm', 'pf', pf_load(), first[12], first[12] + 2))
    if opt.get('d_oob'):
        A(f's_mov_b32 s{sX+2}, 0\ns_mov_b32 s{sWg+2}, 0\ns_mov_b32 s{sWu+2}, 0\ns_mov_b32 s{sHr+2}, 0\ns_mov_b32 s{sHi+2}, 0')
    if opt.get('d_nova'):
        st_va = []
    if opt.get('d_noagpr'):
        st_rd = [f for f in st_rd if ' a[' not in f[2]]
    sched.place(P, anchors, [st_rd, st_dm, st_va], slack=opt.get('dft_slack', 10))
    if opt.get('stamps'):
        P.i("s_memtime s[76:77]")

    vS = vT + 2
    vmu, vk1, vk3, vci, vrs = vF, 8, 12, 14, vT
    vWr = vRb
    vCw = vB + 32
    vC = vQ
    vNS = vXb
    P.i(f"""
    v_bfe_u32 v{v_t2}, v{v_lane}, 2, 2
    v_lshl_add_u32 v{v_t2}, v{v_t1}, 3, v{v_t2}
    v_lshlrev_b32 v{v_t2}, 5, v{v_t2}
    v_and_b32 v{vWr+1}, 3, v{v_lane}
    v_lshl_add_u32 v{v_t2}, v{vWr+1}, 3, v{v_t2}
    v_bfe_u32 v{vWr+1}, v{v_lane}, 4, 1
    v_mul_u32_u24 v{vWr+1}, {16384+128}, v{vWr+1}
    v_add_u32 v{v_t2}, v{v_t2}, v{vWr+1}
    v_add_u32 v{vWr}, {WL}, v{v_t2}
    v_xor_b32 v{vWr+1}, 128, v{vWr}
    v_add_u32 v{vWr+2}, s{s_mx}, v{vWr}
    v_add_u32 v{vWr+3}, s{s_mx}, v{vWr+1}
    v_accvgpr_read_b32 v{vS}, a{aS}
    v_add_f32 v{vQ}, v{vQ}, v{vQ+1}
""")
    P.wait(vm=['w'])
    for kk in range(8):
        for p in range(2):
            P.ds(f'cw{kk}', f"ds_read_b64_tr_b16 {vr(vCw+4*kk+2*p,2)}, v{vWr+2+p} offset:{512*kk}")
        if kk == 5:
            P.wait(lg=['cw1'])
    for x in stats_finalize(vS, vQ, vmu, vk1, vk3, vci, vrs, v_t3, v_t2): P.i(x)
    vRs = vB
    P.i(f"""
    s_add_u32 s{s_t0}, s{s_mx}, {SC}
    v_lshl_add_u32 v{v_t2}, v{v_lane}, 2, s{s_t0}
    v_lshl_add_u32 v{v_t3}, v{v_t1}, 4, s{s_t0}
""")
    P.ds('rsw', f"ds_write_b32 v{v_t2}, v{vrs}")
    P.i(f"v_mov_b32 v{vmu+1}, 0\nv_mov_b32 v{vmu+2}, 0\nv_mov_b32 v{vmu+3}, 0")
    P.wait(lg=['rsw'])
    for q in range(4):
        P.ds('rs', f"ds_read_b128 {vr(vRs+4*q,4)}, v{v_t3} offset:{32*q}")
    for kk in range(8):
        c = '0' if kk == 0 else vr(vC, 4)
        P.i(f"v_mfma_f32_16x16x32_bf16 {vr(vC,4)}, {vr(vSel,4)}, {vr(vCw+4*kk,4)}, {c}")
        P.i(f"v_accvgpr_read_b32 v{vNS+kk}, a{aC+8+kk}")
    vEx = vRx
    P.i(f"""
    v_lshlrev_b32 v{v_t3}, 4, v{v_lane}
    v_add_u32 v{vEx}, s{s_mx}, v{v_t3}
""")
    for k in range(8):
        P.i(f"v_xor_b32 v{vNS+k}, s{s_neg}, v{vNS+k}")
    P.ds('csw', f"ds_write_b32 v{v_t2}, v{vC} offset:1024")
    P.wait(lg=['rs'])

    def scale(T):
        L = []
        for c in (acc + 32 * T, acc + 32 * T + 16):
            for k in range(0, 16, 2):
                L.append(f"v_pk_mul_f32 {vr(c+k,2)}, {vr(c+k,2)}, {vr(vRs+k,2)}")
            for k in range(8):
                L.append(f"v_cvt_pk_bf16_f32 v{c+k}, v{c+2*k}, v{c+2*k+1}")
        return L

    def stage1(T, r1, r2):
        fa, fb = acc + 32 * T, acc + 32 * T + 16
        M = "v_mfma_f32_32x32x16_bf16"
        return [f"{M} {vr(r1,16)}, {ar(aC,4)}, {vr(fa,4)}, 0",
                f"{M} {vr(r2,16)}, {ar(aC,4)}, {vr(fb,4)}, 0",
                f"{M} {vr(r1,16)}, {ar(aC+4,4)}, {vr(fa+4,4)}, {vr(r1,16)}",
                f"{M} {vr(r2,16)}, {ar(aC+4,4)}, {vr(fb+4,4)}, {vr(r2,16)}",
                f"{M} {vr(r1,16)}, {vr(vNS,4)}, {vr(fb,4)}, {vr(r1,16)}",
                f"{M} {vr(r2,16)}, {ar(aC+8,4)}, {vr(fa,4)}, {vr(r2,16)}",
                f"{M} {vr(r1,16)}, {vr(vNS+4,4)}, {vr(fb+4,4)}, {vr(r1,16)}",
                f"{M} {vr(r2,16)}, {ar(aC+12,4)}, {vr(fa+4,4)}, {vr(r2,16)}"]

    def pub(T, r1, r2, e, dl):
        L = []
        for q in range(4):
            for r in range(4 * q, 4 * q + 4):
                L.append(('i', None, f"v_cvt_pk_bf16_f32 v{r1+r}, v{r1+r}, v{r2+r}", e, dl))
            L.append(('ds', f'p{T}', f"ds_write_b128 v{vEx}, {vr(r1+4*q,4)} offset:{16384*T+1024*q}", e, dl))
        return L

    def out_ops(Tp, regs, e, dl):
        L = []
        for qq in range(2):
            for w2 in range(4):
                L.append(('ds', f'o{Tp}_{qq}', f"ds_read_b128 {vr(regs+16*qq+4*w2,4)}, v{vOr} offset:{16384*Tp+4096*w2+1024*qq}", e, dl))
        for qq in range(2):
            b0 = regs + 16 * qq
            L.append(('w', [f'o{Tp}_{qq}'], None, e, dl))
            for i in range(4):
                for j in range(i + 1, 4):
                    L.append(('i', None, f"v_swap_b32 v{b0+4*i+j}, v{b0+4*j+i}", e, dl, 10))
            for r in range(4):
                L.append(('vm', 'st', f"s_add_u32 s{s_t0}, s{s_so}, {(8*qq+r)*65536+Tp*8192}\n"
                          f"buffer_store_dwordx4 {vr(b0+4*r,4)}, v{vOs}, {sr(sWs,4)}, s{s_t0} offen {t_aux}", e, dl, 25))
        return L

    vOr, vOs = vRx + 1, vRx + 2
    for x in scale(0) + scale(1): P.i(x)
    P.i(f"""
    s_lshr_b32 s{s_t1}, s{s_w}, 1
    s_and_b32 s{s_t2}, s{s_w}, 1
    s_lshl_b32 s{s_t0}, s{s_t1}, 14
    s_lshl_b32 s{s_so}, s{s_t2}, 11
    s_add_u32 s{s_t0}, s{s_t0}, s{s_so}
    v_add_u32 v{vOr}, s{s_t0}, v{v_t3}
    v_lshlrev_b32 v{vOs}, 4, v{v_t0}
    v_lshl_add_u32 v{vOs}, v{v_t1}, 18, v{vOs}
    s_lshl_b32 s{s_so}, s{s_par}, 15
    s_lshl_b32 s{s_t1}, s{s_t1}, 13
    s_add_u32 s{s_so}, s{s_so}, s{s_t1}
    s_lshl_b32 s{s_t1}, s{s_rb}, 9
    s_add_u32 s{s_so}, s{s_so}, s{s_t1}
    s_lshl_b32 s{s_t2}, s{s_t2}, 20
    s_add_u32 s{s_so}, s{s_so}, s{s_t2}
    s_add_u32 s{s_so}, s{s_so}, {T_OFF}
""")
    RA = (vB + 32, vB + 48)
    for x in scale(2) + scale(3): P.i(x)
    RB = (vB, vB + 16)
    if opt.get('stamps'):
        P.i("s_memtime s[78:79]")
    MA = lambda L: [dict(text=t, cap=25) for t in L]
    for x in stage1(0, *RA): P.i(x)
    an = MA(stage1(1, *RB))
    an[2].update(pre=lambda P: P.i("s_nop 9"))
    sched.place(P, an, [pub(0, *RA, 2, 7)])
    an = MA(stage1(2, *RA))
    an[0].update(pre=lambda P: P.wait(lg=['p0']))
    an[2].update(pre=lambda P: P.i("s_nop 9"))
    sched.place(P, an, [pub(1, *RB, 2, 7)])
    P.wait(lg='all')
    P.i("s_barrier")
    RO = acc
    an = MA(stage1(3, *RB))
    sched.place(P, an, [pub(2, *RA, 3, 7), out_ops(0, RO, 0, 2)[:8]])
    rest = out_ops(0, RO, 0, 0)[8:]
    k = len(rest) // 2
    for f in rest[:k]: P.add(f)
    for f in pub(3, *RB, 0, 0): P.add(f)
    for f in rest[k:]: P.add(f)
    if opt.get('stamps'):
        P.i("s_memtime s[80:81]")
    vCp = acc + 64
    P.i(f"v_lshlrev_b32 v{vEx}, 2, v{v_lane}\nv_add_u32 v{vEx}, {SC}, v{vEx}")
    P.wait(lg='all')
    P.i("s_barrier")
    for w2 in range(4):
        P.ds('cp', f"ds_read_b32 v{vCp+w2}, v{vEx} offset:{4096*w2+1024}")
    accL = acc + 80
    vWf = vB
    NB = 4

    def rd_w(kk):
        return [f"ds_read_b64_tr_b16 {vr(vWf+4*(kk%NB)+2*p,2)}, v{vWr+p} offset:{512*kk}" for p in range(2)]
    for kk in range(NB - 1):
        for x in rd_w(kk): P.ds(f'l{kk}', x)
    an = []
    st_rd = []
    for kk in range(32):
        c = '0' if kk == 0 else vr(accL, 16)
        an.append(dict(text=f"v_mfma_f32_32x32x16_bf16 {vr(accL,16)}, {vr(vWf+4*(kk%NB),4)}, {ar(4*kk,4)}, {c}", cap=25,
                       pre=lambda P, kk=kk: P.wait(lg=[f'l{kk}']), precost=5))
        if kk + NB - 1 < 32:
            for x in rd_w(kk + NB - 1):
                st_rd.append(('ds', f'l{kk+NB-1}', x, kk, kk))
    cs = [f"v_add_f32 v{vCp}, v{vCp}, v{vCp+1}", f"v_add_f32 v{vCp+2}, v{vCp+2}, v{vCp+3}", f"v_add_f32 v{vCp}, v{vCp}, v{vCp+2}"]
    cs += split_hilo(vSel, vCp, vCp + 1)
    sched.place(P, an, [st_rd, out_ops(2, acc + 32, 0, 30), [('i', None, t, 20, 29) for t in cs]])
    if opt.get('stamps'):
        P.i("s_memtime s[82:83]")
    P.i(f"""
    v_mfma_f32_32x32x16_bf16 {vr(accL,16)}, {vr(vSel,4)}, {vr(vmu,4)}, {vr(accL,16)}
    s_mul_i32 s{s_so}, s{s_a}, 86
    s_add_u32 s{s_so}, s{s_so}, s{s_par}
    s_add_u32 s{s_so}, s{s_so}, 84
    s_lshl_b32 s{s_so}, s{s_so}, 10
    s_nop 7
""")
    for x in gelu_unit(accL, vWf + 24, vWf + 16, vk1, vk3, vci):
        P.i(x)
    P.i(f"buffer_store_dwordx4 {vr(vWf+16,4)}, v{v_t3}, {sr(sWs,4)}, s{s_so} offen {st_aux}")
    P.emit(A, vm0=vm0)
    if opt.get('stamps'):
        A("s_waitcnt vmcnt(0)")
        stamp(A, opt, 7)
        emit_stamp_store(A, 8, sWs, 0x1000000, s_w, v_lane)
    v_pq = v_pq_save
    return lds
```

```python
class Prog:
    def __init__(self):
        self.e = []

    def i(self, text):
        for t in text.split('\n'):
            if t.strip():
                self.e.append(('i', None, t.strip()))

    def ds(self, tag, text):
        self.e.append(('ds', tag, text))

    def vm(self, tag, text):
        self.e.append(('vm', tag, text))

    def wait(self, lg=None, vm=None):
        self.e.append(('w', (lg, vm), None))

    def add(self, f):
        kind, tag, text = f[:3]
        if kind == 'w':
            self.wait(lg=tag)
        elif kind == 'i':
            self.i(text)
        else:
            lines = [t for t in text.split('\n') if t.strip()]
            for t in lines[:-1]:
                self.i(t)
            self.e.append((kind, tag, lines[-1].strip()))

    def emit(self, A, ds0=(), vm0=()):
        q = {'ds': list(ds0), 'vm': list(vm0)}
        done = {'ds': 0, 'vm': 0}
        prev = ''
        for kind, tag, text in self.e:
            if kind == 'i' and text == 's_nop 0 ;m0' and ' m0,' not in prev:
                continue
            prev = text or ''
            if kind == 'i':
                A(text)
            elif kind in ('ds', 'vm'):
                q[kind].append(tag)
                A(text)
            else:
                parts = []
                for k, tags, name, mx in (('vm', tag[1], 'vmcnt', 63), ('ds', tag[0], 'lgkmcnt', 15)):
                    if tags is None:
                        continue
                    if tags == 'all':
                        last = len(q[k]) - 1
                    else:
                        idx = [n for n, t in enumerate(q[k]) if t in tags]
                        assert idx and all(t in q[k] for t in tags), f"wait for {tags} not issued"
                        last = max(idx)
                    if last < done[k]:
                        continue
                    n = len(q[k]) - 1 - last
                    n = min(n, mx)
                    done[k] = len(q[k]) - n
                    parts.append(f"{name}({n})")
                if parts:
                    A("s_waitcnt " + " ".join(parts))
        return q, done


COST = {'i': 5, 'ds': 5, 'vm': 8}


def place(P, anchors, streams, slack=0):
    pos = [0] * len(streams)
    n = len(anchors)

    def cost(f):
        if len(f) > 5:
            return f[5]
        if f[0] == 'w':
            return 5
        extra = 5 * (len([t for t in f[2].split('\n') if t.strip()]) - 1)
        return COST[f[0]] + extra
    over = 0
    for g, a in enumerate(anchors):
        if a.get('pre'):
            a['pre'](P)
        P.i(a['text'])
        room = a['cap'] + slack - (anchors[g + 1].get('precost', 0) if g + 1 < n else 0)
        while True:
            cand = [(st[pos[k]][4], k) for k, st in enumerate(streams) if pos[k] < len(st) and st[pos[k]][3] <= g]
            if not cand:
                break
            cand.sort(key=lambda c: (streams[c[1]][pos[c[1]]][0] != 'vm' or room < a['cap'] - 10, c[0]))
            placed = False
            for dl, k in cand:
                f = streams[k][pos[k]]
                if dl <= g or g == n - 1 or cost(f) <= room:
                    P.add(f)
                    room -= cost(f)
                    pos[k] += 1
                    placed = True
                    break
            if not placed:
                break
        if room < 0:
            over += -room
    for k, st in enumerate(streams):
        assert pos[k] == len(st), f"stream {k} not placed: {st[pos[k]]}"
    return over
```

```python
import sys
import sched

NAME = 'recurrent_scan__spectral_fnet__geglu_ffn__prompt'
T_OFF = 0x600000
WS_USED = 0x900000
import os
UST = int(os.environ.get('UST', 65536))
LOG2E = 1.4426950408889634
TSIGN = 1


def f2u(x):
    import struct
    return struct.unpack('<I', struct.pack('<f', x))[0]


class Asm:
    def __init__(self):
        self.L = []

    def __call__(self, s):
        for line in s.split('\n'):
            line = line.strip()
            if line:
                self.L.append(('' if line.endswith(':') else '    ') + line)

    def text(self):
        return '\n'.join(self.L) + '\n'


def vr(a, n=1):
    return f"v{a}" if n == 1 else f"v[{a}:{a+n-1}]"


def ar(a, n=1):
    return f"a{a}" if n == 1 else f"a[{a}:{a+n-1}]"


def sr(a, n=1):
    return f"s{a}" if n == 1 else f"s[{a}:{a+n-1}]"


def kdesc(name, vgpr, sgpr, accum):
    return f""".amdhsa_kernel {name}
  .amdhsa_next_free_vgpr {vgpr}
  .amdhsa_next_free_sgpr {sgpr}
  .amdhsa_accum_offset {accum}
  .amdhsa_group_segment_fixed_size 0
  .amdhsa_kernarg_size 96
  .amdhsa_user_sgpr_count 2
  .amdhsa_user_sgpr_kernarg_segment_ptr 1
  .amdhsa_system_sgpr_workgroup_id_x 1
  .amdhsa_float_denorm_mode_32 3
.end_amdhsa_kernel
"""


def stamp(A, opt, idx):
    if opt.get('stamps'):
        A(f"s_memtime s[{70+2*idx}:{71+2*idx}]")


def gen_k2(A, opt):
    D = opt.get('k2_dist', 3)
    R = D + 1
    NST = 11
    rot = opt.get('k2_rot', 0)
    ypos = opt.get('k2_ypos', 1)
    sH, sWd, sT, sX, sOut = 8, 12, 16, 24, 28
    s_w, s_j, s_i, s_u, s_cb = 32, 33, 34, 35, 36
    s_hoff, s_woff, s_m0, s_t0, s_t1, s_sign = 37, 38, 39, 40, 41, 42
    s_toff, s_st, s_xoff = 43, 44, 45
    s_p0, s_p1 = 46, 47
    s_zm = 48
    s_c = 50
    s_hb, s_wb, s_a = 51, 52, 53
    s_xl, s_mt, s_r = 54, 55, 56
    v_lane, v_t0, v_t1, v_t2, v_t3 = 1, 2, 3, 4, 5
    v_h = 6
    v_w = 8
    v_r = 12
    v_T = 14
    v_tok = 16
    v_x = 17
    v_ex = 18
    vG = 20
    v_xd = 24
    v_Tr = 26
    v_xr = 28
    accO = [32, 48]
    accY = [64, 80]
    vTf = 96
    vMf = 144
    vX = 160
    vWf = 168
    vHf = 184
    assert vHf + 16 * R <= 256
    EXO = R * 16384
    TL = EXO + 32768
    XL = TL + 16384
    lds = XL + 8192

    A(f"""
k2_kernel:
    s_cmp_ge_u32 s2, 256
    s_cbranch_scc1 K2_end
    s_load_dwordx2 {sr(sH,2)}, s[0:1], 88
    s_load_dwordx2 {sr(sWd,2)}, s[0:1], 64
    s_load_dwordx2 {sr(sT,2)}, s[0:1], 88
    s_load_dwordx2 {sr(sX,2)}, s[0:1], 0
    s_load_dwordx2 {sr(sOut,2)}, s[0:1], 72
""")
    if opt.get('stamps'):
        A("s_memrealtime s[66:67]")
    stamp(A, opt, 0)
    A(f"""
    v_lshrrev_b32 v{v_t0}, 6, v0
    v_and_b32 v{v_lane}, 63, v0
    s_mov_b32 s{sH+2}, {64*86*1024}
    s_mov_b32 s{sH+3}, 0x20000
    v_readfirstlane_b32 s{s_w}, v{v_t0}
    s_mov_b32 s{sWd+2}, {1376*1024}
    s_mov_b32 s{sWd+3}, 0x20000
""")
    if opt.get('k2_map', 0) == 0:
        A(f"""
    s_lshr_b32 s{s_t0}, s2, 3
    s_and_b32 s{s_u}, s{s_t0}, 7
    s_lshr_b32 s{s_cb}, s{s_t0}, 3
    s_and_b32 s{s_t0}, s2, 6
    s_lshl_b32 s{s_t0}, s{s_t0}, 2
    s_add_u32 s{s_u}, s{s_u}, s{s_t0}
    s_and_b32 s{s_t0}, s2, 1
    s_lshl_b32 s{s_t0}, s{s_t0}, 2
    s_add_u32 s{s_cb}, s{s_cb}, s{s_t0}
""")
    else:
        A(f"""
    s_bfe_u32 s{s_u}, s2, 0x20003
    s_lshr_b32 s{s_cb}, s2, 5
    s_and_b32 s{s_t0}, s2, 7
    s_lshl_b32 s{s_t0}, s{s_t0}, 2
    s_add_u32 s{s_u}, s{s_u}, s{s_t0}
""")
    A(f"""
    s_and_b32 s{s_j}, s{s_w}, 1
    s_lshr_b32 s{s_i}, s{s_w}, 1
    ; h
    v_lshlrev_b32 v{v_h}, 4, v{v_lane}
    s_lshl_b32 s{s_a}, s{s_j}, 5
    s_add_u32 s{s_a}, s{s_a}, s{s_u}          ; a = u + 32 j
    s_mul_i32 s{s_hb}, s{s_a}, {86*1024}
    s_mul_i32 s{s_t0}, s{s_i}, {44*1024}
    s_add_u32 s{s_hb}, s{s_hb}, s{s_t0}
    v_lshrrev_b32 v{v_t0}, 3, v{v_lane}
    v_and_b32 v{v_t1}, 7, v{v_lane}
    v_lshrrev_b32 v{v_t2}, 2, v{v_lane}
    v_and_b32 v{v_t2}, 4, v{v_t2}
    v_xor_b32 v{v_t1}, v{v_t1}, v{v_t2}
    v_lshlrev_b32 v{v_t1}, 4, v{v_t1}
    v_lshl_add_u32 v{v_w}, v{v_t0}, 10, v{v_t1}
    v_add_u32 v{v_w+1}, {8192-1024}, v{v_w}
    v_add_u32 v{v_w+2}, {2*(8192-1024)}, v{v_w}
    v_add_u32 v{v_w+3}, {3*(8192-1024)}, v{v_w}
    s_mul_i32 s{s_wb}, s{s_i}, {704*1024}
    s_lshl_b32 s{s_t0}, s{s_j}, 15
    s_add_u32 s{s_wb}, s{s_wb}, s{s_t0}
    s_lshl_b32 s{s_t0}, s{s_cb}, 7
    s_add_u32 s{s_wb}, s{s_wb}, s{s_t0}
    s_lshl_b32 s{s_m0}, s{s_i}, 13
    s_lshl_b32 s{s_t0}, s{s_j}, 12
    s_add_u32 s{s_m0}, s{s_m0}, s{s_t0}
""")
    if rot == 1:
        A(f"s_and_b32 s{s_st}, s{s_cb}, 3\ns_mul_i32 s{s_st}, s{s_st}, 3")
    elif rot == 2:
        A(f"s_and_b32 s{s_st}, s{s_cb}, 1\ns_mul_i32 s{s_st}, s{s_st}, 5")
    elif rot == 3:
        A(f"s_and_b32 s{s_st}, s{s_u}, 3\ns_add_u32 s{s_st}, s{s_st}, s{s_cb}")
    elif rot == 4:
        A(f"s_mov_b32 s{s_st}, s{s_cb}")
    elif rot in (11, 13):
        A(f"s_add_u32 s{s_r}, s{s_cb}, s{s_u}\ns_and_b32 s{s_r}, s{s_r}, {rot-10}")
    else:
        A(f"s_mov_b32 s{s_st}, 0")

    def stage_parts(s):
        slot = (s % R) * 16384
        hb = vHf + 16 * (s % R)
        P = []
        for q in range(4):
            off = f" offset:{1024*q}" if q else ""
            t = ""
            if q == 0 and rot in (11, 13):
                if s < 8:
                    t = f"s_xor_b32 s{s_st}, s{s_r}, {s}\n"
                elif s < 10:
                    t = f"s_and_b32 s{s_st}, s{s_r}, 1\ns_xor_b32 s{s_st}, s{s_st}, {s}\n"
                else:
                    t = f"s_mov_b32 s{s_st}, {s}\n"
            if q == 0:
                t += (f"s_lshl_b32 s{s_hoff}, s{s_st}, 12\ns_add_u32 s{s_hoff}, s{s_hoff}, s{s_hb}\n"
                     f"s_lshl_b32 s{s_woff}, s{s_st}, 16\ns_add_u32 s{s_woff}, s{s_woff}, s{s_wb}\n"
                     f"s_add_u32 m0, s{s_m0}, {slot}\n")
            t += f"buffer_load_dwordx4 {vr(hb+4*q,4)}, v{v_h}, {sr(sH,4)}, s{s_hoff} offen{off}\n"
            t += f"buffer_load_dwordx4 v{v_w+q}, {sr(sWd,4)}, s{s_woff} offen{off} lds\n"
            if q == 3 and s < NST - 1 and rot not in (11, 13):
                t += f"s_add_u32 s{s_st}, s{s_st}, 1\n"
                if rot:
                    t += f"s_cmp_eq_u32 s{s_st}, {NST}\ns_cselect_b32 s{s_st}, 0, s{s_st}\n"
            P.append(t)
        return P

    def issue_stage(s):
        for t in stage_parts(s):
            A(t)
        return 8

    A("s_waitcnt lgkmcnt(0)")
    stamp(A, opt, 1)
    vm = []
    vm += ['s0'] * issue_stage(0)
    A(f"""
    s_mov_b32 s{sT+2}, {WS_USED}
    s_mov_b32 s{sT+3}, 0x20000
    s_mov_b32 s{sX+2}, {2048*1024}
    s_mov_b32 s{sX+3}, 0x20000
    s_mov_b32 s{sOut+2}, {2048*1024}
    s_mov_b32 s{sOut+3}, 0x20000
""")
    if opt.get('tlb', 1):
        A(f"s_mov_b32 s{s_t0}, {T_OFF}")
        A(f"buffer_load_dword v29, off, {sr(sT,4)}, s{s_t0}")
        A(f"buffer_load_dword v30, off, {sr(sX,4)}, 0")
        A(f"buffer_load_dword v31, off, {sr(sOut,4)}, 0")
        vm += ['t'] * 3
    vm += ['s1'] * issue_stage(1)
    A(f"""
    ; T voffsets
    v_and_b32 v{v_t0}, 31, v{v_lane}            ; n
    v_lshrrev_b32 v{v_t1}, 5, v{v_lane}         ; h
    s_lshl_b32 s{s_t0}, s{s_cb}, 6
    v_and_b32 v{v_t2}, 15, v{v_lane}
    v_bfe_u32 v{v_t3}, v{v_lane}, 4, 1
    v_lshl_add_u32 v{v_t2}, v{v_t2}, 1, v{v_t3}
    v_add_u32 v{v_ex}, s{s_t0}, v{v_t2}
    s_cmp_ge_u32 s{s_cb}, 4
    s_cselect_b32 s{s_sign}, {'-1.0, 1.0' if TSIGN else '1.0, -1.0'}
    s_cselect_b32 s{s_p0}, -1, 0                ; mirror: e' = 512 - e = (e ^ -1) + 513
    s_cselect_b32 s{s_p1}, 513, 0
""")
    for ct in range(2):
        if ct == 1:
            A(f"v_xor_b32 v{v_ex}, 32, v{v_ex}")
        A(f"""
    v_xor_b32 v{v_t2}, s{s_p0}, v{v_ex}
    v_add_u32 v{v_t2}, s{s_p1}, v{v_t2}         ; e'
    v_and_b32 v{v_t3}, 1, v{v_t2}
    v_lshlrev_b32 v{v_T+ct}, 15, v{v_t3}        ; par*32768
    v_bfe_u32 v{v_t3}, v{v_t2}, 6, 2            ; tile = (e'>>6)&3
    v_lshl_add_u32 v{v_T+ct}, v{v_t3}, 13, v{v_T+ct}
    v_bfe_u32 v{v_t3}, v{v_t2}, 1, 5            ; n = (e'>>1)&31
    v_lshl_add_u32 v{v_T+ct}, v{v_t3}, 4, v{v_T+ct}
    v_lshl_add_u32 v{v_T+ct}, v{v_t1}, 9, v{v_T+ct}
""")
    A(f"""
    s_xor_b32 s{s_t0}, s{s_u}, s{s_p0}
    s_add_u32 s{s_t0}, s{s_t0}, s{s_p1}
    s_and_b32 s{s_t0}, s{s_t0}, 31              ; mirror: (513 + ~u) & 31 = (512-u)&31 = (32-u)&31
    s_mul_i32 s{s_toff}, s{s_t0}, {UST}
    s_lshl_b32 s{s_t0}, s{s_w}, 11
    s_add_u32 s{s_toff}, s{s_toff}, s{s_t0}
    s_add_u32 s{s_toff}, s{s_toff}, {T_OFF}
    s_add_u32 s{s_mt}, s{s_t0}, {TL}
    s_mul_i32 s{s_t0}, s{s_i}, {8192+4096}
    s_add_u32 s{s_t0}, s{s_t0}, {TL}
    v_and_b32 v{v_t2}, 1, v{v_lane}
    v_bfe_u32 v{v_t3}, v{v_lane}, 1, 4
    v_lshl_add_u32 v{v_t2}, v{v_t2}, 4, v{v_t3}
    v_lshl_add_u32 v{v_t2}, v{v_t1}, 5, v{v_t2}
    v_lshl_add_u32 v{v_Tr}, v{v_t2}, 4, s{s_t0}
    v_xor_b32 v{v_Tr+1}, 8192, v{v_Tr}
    v_lshrrev_b32 v{v_t2}, 3, v{v_lane}
    v_lshrrev_b32 v{v_t3}, 4, v{v_lane}
    v_and_b32 v{v_xd}, 7, v{v_lane}
    v_xor_b32 v{v_xd}, v{v_xd}, v{v_t3}
    v_lshlrev_b32 v{v_xd}, 4, v{v_xd}
    v_lshl_add_u32 v{v_xd}, v{v_t2}, 16, v{v_xd}
    v_xor_b32 v{v_xd+1}, 64, v{v_xd}
    v_add_u32 v{v_xd+1}, {8*65536-1024}, v{v_xd+1}
    s_lshl_b32 s{s_xl}, s{s_i}, 5
    s_add_u32 s{s_xl}, s{s_xl}, s{s_u}
    s_lshl_b32 s{s_xl}, s{s_xl}, 10
    s_lshl_b32 s{s_t0}, s{s_j}, 20
    s_add_u32 s{s_xl}, s{s_xl}, s{s_t0}
    s_lshl_b32 s{s_t0}, s{s_cb}, 7
    s_add_u32 s{s_xl}, s{s_xl}, s{s_t0}
    v_bfe_u32 v{v_t2}, v{v_lane}, 1, 3
    v_lshlrev_b32 v{v_t2}, 4, v{v_t2}
    v_lshl_add_u32 v{v_t2}, v{v_t0}, 7, v{v_t2}
    v_lshl_add_u32 v{v_t2}, v{v_t1}, 3, v{v_t2}
    s_lshl_b32 s{s_t0}, s{s_i}, 6
    v_xor_b32 v{v_t2}, s{s_t0}, v{v_t2}
    s_lshl_b32 s{s_t0}, s{s_j}, 12
    s_add_u32 s{s_t0}, s{s_t0}, {XL}
    v_add_u32 v{v_xr}, s{s_t0}, v{v_t2}
    v_lshlrev_b32 v{v_x}, 16, v{v_t0}
    v_lshl_add_u32 v{v_x}, v{v_t1}, 4, v{v_x}
    s_lshl_b32 s{s_xoff}, s{s_a}, 10
    s_lshl_b32 s{s_t0}, s{s_i}, 6
    s_add_u32 s{s_xoff}, s{s_xoff}, s{s_t0}
    s_lshl_b32 s{s_t0}, s{s_cb}, 7
    s_add_u32 s{s_xoff}, s{s_xoff}, s{s_t0}
    v_lshl_add_u32 v{v_tok}, v{v_t0}, 6, s{s_a}   ; token t = a + 64 b
""")
    A(f"""
    v_bfe_u32 v{v_t0}, v{v_lane}, 2, 2          ; r
    v_lshlrev_b32 v{v_r}, 7, v{v_t0}            ; r*128
    v_lshl_add_u32 v{v_r}, v{v_t1}, 9, v{v_r}   ; + 4h*128
    v_and_b32 v{v_t2}, 3, v{v_lane}
    v_lshl_add_u32 v{v_r}, v{v_t2}, 3, v{v_r}   ; + 8c
    v_bfe_u32 v{v_t2}, v{v_lane}, 4, 1
    v_lshl_add_u32 v{v_r}, v{v_t2}, 5, v{v_r}   ; + 32 cg
    v_bfe_u32 v{v_t2}, v{v_lane}, 3, 1          ; (r>>1)&1
    v_lshl_add_u32 v{v_r}, v{v_t2}, 6, v{v_r}
    s_mul_i32 s{s_t0}, s{s_i}, {8192+64}
    v_xor_b32 v{v_r}, s{s_t0}, v{v_r}
    v_xor_b32 v{v_r+1}, 64, v{v_r}
    s_lshl_b32 s{s_t0}, s{s_w}, 12
    s_add_u32 s{s_t0}, s{s_t0}, {EXO}
    v_add_u32 v{v_ex}, s{s_t0}, v{v_h}
    s_or_b32 s{s_t0}, s{s_cb}, s{s_i}
    s_cmp_eq_u32 s{s_t0}, 0
    s_cselect_b32 s{s_zm}, -1, 0
    s_mov_b32 s{s_zm+1}, 0
""")
    A(f"""
    s_lshl_b32 s{s_t0}, s{s_i}, 5
    v_lshl_add_u32 v{v_t2}, v{v_t1}, 2, s{s_t0}  ; a'0 = 32 i + 4 h
    v_mul_u32_u24 v{v_t2}, v{v_t2}, v{v_tok}     ; t * a'0
    v_lshlrev_b32 v{v_t3}, 2, v{v_tok}           ; 4 t
    s_mov_b32 s{s_c}, {hex(f2u(1.0/2048))}
""")
    tw = []
    for qq in range(4):
        for k in range(4):
            g = vG + 2 * (k & 1)
            tw += [f"v_and_b32 v{g}, 2047, v{v_t2}",
                   f"v_add_u32 v{v_t2}, v{v_t2}, v{v_tok}",
                   f"v_cvt_f32_u32 v{g}, v{g}",
                   f"v_mul_f32 v{g}, s{s_c}, v{g}",
                   f"v_sin_f32 v{g+1}, v{g}",
                   f"v_cos_f32 v{g}, v{g}",
                   f"v_mul_f32 v{g+1}, s{s_sign}, v{g+1}",
                   f"v_cvt_pk_bf16_f32 v{vMf+4*qq+k}, v{g}, v{g+1}"]
        tw.append(f"v_add_u32 v{v_t2}, v{v_t2}, v{v_t3}")
    for x in tw:
        A(x)
    for s in range(2, D):
        vm += [f's{s}'] * issue_stage(s)

    P = sched.Prog()

    def reads(s, ks, buf):
        slot = (s % R) * 16384
        for ct in range(2):
            for p in range(2):
                P.ds(f'w{s}_{ks}', f"ds_read_b64_tr_b16 {vr(vWf+buf*8+ct*4+2*p,2)}, v{v_r+ct} offset:{slot+ks*2048+p*1024}")

    def vm_text(t, s):
        for line in t.split("\n"):
            if line.startswith("buffer"):
                P.vm('y' if ';y' in line else f's{s+D}', line)
            else:
                P.i(line)

    first = [True, True]
    ydo = ypos + D + 2
    for s in range(NST):
        P.wait(vm=[f's{s}'])
        P.i("s_barrier")
        if s in (0, 2, 4, 6, 8, 10) and opt.get('stamps'):
            P.i(f"s_memtime s[{74+s}:{75+s}]")
        reads(s, 0, 0)
        parts = [""] * 4
        if s + D < NST:
            parts = stage_parts(s + D)
        if s == ypos:
            for ct in range(2):
                parts[3] += (f"s_add_u32 m0, s{s_mt}, {8192*ct}\ns_nop 0\n"
                             f"buffer_load_dwordx4 v{v_T+ct}, {sr(sT,4)}, s{s_toff} offen lds ;y\n"
                             f"buffer_load_dwordx4 v{v_T+ct}, {sr(sT,4)}, s{s_toff} offen offset:1024 lds ;y\n")
        if s == ypos + 1:
            parts[3] += (f"s_add_u32 m0, s{s_mt}, {XL-TL}\ns_nop 0\n"
                         f"buffer_load_dwordx4 v{v_xd}, {sr(sX,4)}, s{s_xl} offen lds ;y\n"
                         f"buffer_load_dwordx4 v{v_xd+1}, {sr(sX,4)}, s{s_xl} offen offset:1024 lds ;y\n")

        def ymf(qq):
            for ct in range(2):
                c = '0' if qq == 0 else vr(accY[ct], 16)
                P.i(f"v_mfma_f32_32x32x16_bf16 {vr(accY[ct],16)}, {vr(vTf+(qq*2+ct)*4,4)}, {vr(vMf+qq*4,4)}, {c}")
        for ks in range(4):
            if ks + 1 < 4:
                reads(s, ks + 1, (ks + 1) & 1)
            hb = vHf + 16 * (s % R) + 4 * ks
            vm_text(parts[ks], s)
            if s == ydo and ks < 2:
                for qq in (2 * ks, 2 * ks + 1):
                    for ct in range(2):
                        P.ds(f't{qq}', f"ds_read_b128 {vr(vTf+(qq*2+ct)*4,4)}, v{v_Tr+ct} offset:{1024*qq}")
            if s == ydo + 1 and ks == 2:
                for q in range(4):
                    P.ds('yw', f"ds_write_b128 v{v_ex}, {vr(accY[1]+4*q,4)} offset:{16384+1024*q}")
            if s == ydo + 2 and ks == 0:
                P.i(f"v_xor_b32 v{v_t0}, 8192, v{v_ex}")
                for q in range(4):
                    P.ds('yr', f"ds_read_b128 {vr(accY[1]+4*q,4)}, v{v_t0} offset:{16384+1024*q}")
            if s == ydo + 2 and ks == 1:
                for q in range(4):
                    P.i(f"v_xor_b32 v{vG+q}, {16*q}, v{v_xr}")
                    P.ds('xr', f"ds_read_b64 {vr(vX+2*q,2)}, v{vG+q}")
            P.wait(lg=[f'w{s}_{ks}'] if ks < 3 else 'all')
            for ct in (1, 0):
                c = '0' if first[ct] else vr(accO[ct], 16)
                first[ct] = False
                P.i(f"v_mfma_f32_32x32x16_bf16 {vr(accO[ct],16)}, {vr(vWf+(ks&1)*8+ct*4,4)}, {vr(hb,4)}, {c}")
            if s == ydo and ks >= 2:
                P.wait(lg=[f't{2*ks-4}', f't{2*ks-3}'])
                ymf(2 * ks - 4); ymf(2 * ks - 3)
            if s == ydo + 2 and ks == 2:
                P.wait(lg=['yr'])
                for q in range(16):
                    P.i(f"v_add_f32 v{accY[0]+q}, v{accY[0]+q}, v{accY[1]+q}")
                P.i(f"v_cndmask_b32 v{accY[0]}, v{accY[0]}, 0, {sr(s_zm,2)}")
            if s == ydo + 2 and ks == 3:
                for k in range(8):
                    P.i(f"v_lshlrev_b32 v{accY[1]+2*k}, 16, v{vX+k}")
                    P.i(f"v_and_b32 v{accY[1]+2*k+1}, 0xffff0000, v{vX+k}")
    assert ydo + 2 < NST
    if opt.get('stamps'):
        P.i("s_memtime s[86:87]")
    P.i(f"s_mov_b32 s{s_p0}, {hex(f2u(-LOG2E))}\ns_mov_b32 s{s_p1}, {hex(f2u(-LOG2E))}\ns_nop 8")
    for q in range(4):
        P.ds('ow', f"ds_write_b128 v{v_ex}, {vr(accO[1]+4*q,4)} offset:{1024*q}")
    P.wait(lg='all')
    P.i("s_barrier")
    for q in range(4):
        P.ds(f'or{q}', f"ds_read_b128 {vr(accO[1]+4*q,4)}, v{v_t0} offset:{1024*q}")
    tmp = vTf
    for q in range(4):
        P.wait(lg=[f'or{q}'])
        o = accO[0] + 4 * q
        t = tmp + 4 * q
        for k in (0, 2):
            P.i(f"v_pk_add_f32 {vr(o+k,2)}, {vr(o+k,2)}, {vr(accO[1]+4*q+k,2)}")
        for k in (0, 2):
            P.i(f"v_pk_mul_f32 {vr(t+k,2)}, {vr(o+k,2)}, {sr(s_p0,2)}")
        for k in range(4):
            P.i(f"v_exp_f32 v{t+k}, v{t+k}")
        for k in (0, 2):
            P.i(f"v_pk_mul_f32 {vr(o+k,2)}, {vr(o+k,2)}, {vr(accY[0]+4*q+k,2)}")
        for k in (0, 2):
            P.i(f"v_pk_add_f32 {vr(t+k,2)}, {vr(t+k,2)}, 1.0 op_sel_hi:[1,0]")
        for k in range(4):
            P.i(f"v_rcp_f32 v{t+k}, v{t+k}")
        if q & 1:
            for qq in (q - 1, q):
                o = accO[0] + 4 * qq
                for k in (0, 2):
                    P.i(f"v_pk_fma_f32 {vr(o+k,2)}, {vr(o+k,2)}, {vr(tmp+4*qq+k,2)}, {vr(accY[1]+4*qq+k,2)}")
                P.i(f"v_cvt_pk_bf16_f32 v{vX+2*qq}, v{o}, v{o+1}")
                P.i(f"v_cvt_pk_bf16_f32 v{vX+2*qq+1}, v{o+2}, v{o+3}")
            Pp = q >> 1
            P.i("s_nop 1")
            P.i(f"v_permlane32_swap_b32 v{vX+4*Pp}, v{vX+4*Pp+2}")
            P.i(f"v_permlane32_swap_b32 v{vX+4*Pp+1}, v{vX+4*Pp+3}")
            P.i(f"buffer_store_dwordx4 {vr(vX+4*Pp,4)}, v{v_x}, {sr(sOut,4)}, s{s_xoff} offen offset:{32*Pp} {opt.get('out_aux','')}")
    P.emit(A, vm0=vm)
    if opt.get('stamps'):
        stamp(A, opt, 9)
        A("s_waitcnt vmcnt(0)")
        stamp(A, opt, 10)
        emit_stamp_store(A, 11, sH, 0x1000000 + 0x40000, s_w, v_lane)
    A("K2_end:")
    A("s_endpgm")
    return lds


def emit_stamp_store(A, n, srd, base, s_w, v_lane):
    A("s_memrealtime s[68:69]")
    A("s_waitcnt lgkmcnt(0)")
    for k in range(n):
        A(f"s_sub_u32 s64, s{70+2*k}, s70")
        A(f"v_writelane_b32 v2, s64, {k}")
    A("v_writelane_b32 v2, s66, 14")
    A("v_writelane_b32 v2, s68, 15")
    A(f"s_lshl_b32 s64, s2, 2\ns_add_u32 s64, s64, s{s_w}\ns_lshl_b32 s64, s64, 6\ns_add_u32 s64, s64, {base}")
    A(f"s_mov_b32 s{srd+2}, 0x2000000")
    A(f"v_lshlrev_b32 v3, 2, v{v_lane}")
    A(f"v_cmp_gt_u32 vcc, 16, v{v_lane}")
    A("s_and_saveexec_b64 s[62:63], vcc")
    A(f"buffer_store_dword v2, v3, {sr(srd,4)}, s64 offen")
    A("s_waitcnt vmcnt(0)")


HEADER = open('cdna_kernels/' + NAME + '.s.ref').read().split('; Override launch')[0] if True else ''


def build(opt):
    A = Asm()
    parts = []
    launches = []
    body = Asm()
    descs = []
    if opt.get('k1', True):
        from gen_k1 import gen_k1
        body(".globl k1_kernel\n.p2align 8\n.type k1_kernel,@function")
        lds1, vg, acc = gen_k1(body, opt)
        launches.append(f"; @launch kernel=k1_kernel grid=(256,1,1) block=(256,1,1) lds={lds1}")
        descs.append(kdesc('k1_kernel', vg, 102, acc))
    if opt.get('k2', True):
        body(".globl k2_kernel\n.p2align 8\n.type k2_kernel,@function")
        lds2 = gen_k2(body, opt)
        lds2 = max(lds2, opt.get('k2_lds_min', 0))
        launches.append(f"; @launch kernel=k2_kernel grid=(256,1,1) block=(256,1,1) lds={lds2}")
        descs.append(kdesc('k2_kernel', 256, 102, 256))
    out = HEADER + '\n'.join(launches) + '\n'
    out += '.amdgcn_target "amdgcn-amd-amdhsa--gfx950"\n.text\n'
    out += body.text()
    out += '.section .rodata,"a"\n'
    for d in descs:
        out += '.p2align 6\n' + d
    return out


if __name__ == '__main__':
    opt = {}
    fn = sys.argv[1]
    for a in sys.argv[2:]:
        k, v = a.split('=')
        opt[k] = int(v)
    open(fn, 'w').write(build(opt))
```

```python
import sched
from gen import Asm, vr, ar, sr, f2u, stamp, emit_stamp_store, T_OFF, WS_USED, LOG2E, UST

GC = 2.0 * 0.7978845608028654 * LOG2E

sX, sWg, sWu, sWs, sHr, sHi = 8, 12, 16, 20, 24, 28
sPf = 4
s_pf = 3
v_pf = 7
s_w, s_rb, s_g, s_a = 32, 33, 34, 35
s_t0, s_t1, s_t2 = 36, 37, 38
s_ones = 39
v_lane, v_t0, v_t1, v_t2, v_t3 = 1, 2, 3, 4, 5
vXd = 8


def interleave(A, mfmas, fillers, lead=0):
    n = len(mfmas)
    k = 0
    for _ in range(lead):
        if k < len(fillers):
            A(fillers[k]); k += 1
    rest = len(fillers) - k
    done = 0
    for j, m in enumerate(mfmas):
        A(m)
        want = (rest * (j + 1) + n - 1) // n
        while done < want:
            A(fillers[k]); k += 1; done += 1


def stats_finalize(vS, vQ, vmu, vk1, vk3, vci, vrs, t0, t1):
    return f"""
    v_mov_b32 v{t0}, v{vS}
    v_mov_b32 v{t1}, v{vQ}
    s_nop 1
    v_permlane32_swap_b32 v{vS}, v{t0}
    v_permlane32_swap_b32 v{vQ}, v{t1}
    v_add_f32 v{vS}, v{vS}, v{t0}
    v_add_f32 v{vQ}, v{vQ}, v{t1}
    v_mul_f32 v{vS}, {hex(f2u(-1.0/512))}, v{vS}
    v_mul_f32 v{vQ}, {hex(f2u(1.0/512))}, v{vQ}
    v_cvt_pk_bf16_f32 v{vmu}, v{vS}, v{vS}
    v_fma_f32 v{vQ}, -v{vS}, v{vS}, v{vQ}
    v_max_f32 v{vQ}, 0, v{vQ}
    v_cvt_pk_bf16_f32 v{vQ}, v{vQ}, v{vQ}
    v_and_b32 v{vQ}, 0xffff0000, v{vQ}
    v_add_f32 v{vQ}, {hex(f2u(1e-5))}, v{vQ}
    v_cvt_pk_bf16_f32 v{vQ}, v{vQ}, v{vQ}
    v_and_b32 v{vQ}, 0xffff0000, v{vQ}
    v_sqrt_f32 v{vQ}, v{vQ}
    s_nop 0
    v_cvt_pk_bf16_f32 v{vQ}, v{vQ}, v{vQ}
    v_and_b32 v{vQ}, 0xffff0000, v{vQ}
    v_rcp_f32 v{vrs}, v{vQ}
    v_mul_f32 v{vci}, v{vQ}, v{vQ}
    v_mul_f32 v{vk1}, {hex(f2u(-GC))}, v{vrs}
    v_mul_f32 v{t0}, v{vrs}, v{vrs}
    v_mul_f32 v{t0}, {hex(f2u(0.044715))}, v{t0}
    v_mul_f32 v{vk3}, v{vk1}, v{t0}
    v_mov_b32 v{vk1+1}, v{vk1}
    v_mov_b32 v{vk3+1}, v{vk3}
    v_mov_b32 v{vci+1}, v{vci}
""".strip().split('\n')


def make_sel(A, vsel, t):
    A(f"""
    v_and_b32 v{t}, 31, v{v_lane}
    v_mov_b32 v{vsel+1}, s{s_ones}
    v_cmp_eq_u32 vcc, 0, v{t}
    v_cmp_eq_u32 s[62:63], 20, v{t}
    s_nop 0
    s_or_b64 vcc, vcc, s[62:63]
    s_nop 1
    v_cndmask_b32 v{vsel}, 0, v{vsel+1}, vcc
    v_mov_b32 v{vsel+1}, v{vsel}
    v_mov_b32 v{vsel+2}, v{vsel}
    v_mov_b32 v{vsel+3}, v{vsel}
""")


def split_hilo(dst, src, t):
    return [f"v_cvt_pk_bf16_f32 v{t}, v{src}, v{src}",
            f"v_and_b32 v{t}, 0xffff0000, v{t}",
            f"v_sub_f32 v{t}, v{src}, v{t}",
            f"v_cvt_pk_bf16_f32 v{dst}, v{src}, v{t}"]


def spread(A, slots, fillers):
    n = len(slots)
    k = 0
    for j, m in enumerate(slots):
        A(m)
        want = (len(fillers) * (j + 1) + n - 1) // n
        while k < want:
            A(fillers[k]); k += 1


def gelu_unit(acc, tmp, out, vk1, vk3, vci):
    L = []
    for k in range(0, 8, 2):
        L.append(f"v_pk_mul_f32 {vr(tmp+k,2)}, {vr(acc+k,2)}, {vr(acc+k,2)}")
    for k in range(0, 8, 2):
        L.append(f"v_pk_fma_f32 {vr(tmp+k,2)}, {vr(tmp+k,2)}, {vr(vk3,2)}, {vr(vk1,2)}")
    for k in range(0, 8, 2):
        L.append(f"v_pk_mul_f32 {vr(tmp+k,2)}, {vr(tmp+k,2)}, {vr(acc+k,2)}")
    for k in range(8):
        L.append(f"v_exp_f32 v{tmp+k}, v{tmp+k}")
    for k in range(0, 8, 2):
        L.append(f"v_pk_mul_f32 {vr(acc+k,2)}, {vr(acc+k,2)}, {vr(acc+8+k,2)}")
    for k in range(0, 8, 2):
        L.append(f"v_pk_fma_f32 {vr(tmp+k,2)}, {vr(tmp+k,2)}, {vr(vci,2)}, {vr(vci,2)}")
    for k in range(8):
        L.append(f"v_rcp_f32 v{tmp+k}, v{tmp+k}")
    L.append("s_nop 0")
    for k in range(0, 8, 2):
        L.append(f"v_pk_mul_f32 {vr(acc+k,2)}, {vr(acc+k,2)}, {vr(tmp+k,2)}")
    for k in range(4):
        L.append(f"v_cvt_pk_bf16_f32 v{out+k}, v{acc+2*k}, v{acc+2*k+1}")
    return L


def pf_setup(A, opt):
    if not opt.get('k2_pf', 1):
        return
    A(f"""
    s_lshr_b32 s{s_t0}, s2, 3                   ; jj
    s_and_b32 s{s_t1}, s2, 1
    s_lshl_b32 s{s_t1}, s{s_t1}, 9
    s_mov_b32 s{sPf+3}, 0x20000
    v_and_b32 v{v_t3}, 3, v0
    v_lshlrev_b32 v{v_t3}, 7, v{v_t3}
    s_cmp_eq_u32 s{s_w}, 3
    s_cbranch_scc1 K1_pfx{pf_setup.n}
    s_mov_b32 s{sPf+2}, {1376*1024}
    s_mul_i32 s{s_pf}, s{s_t0}, {43*1024}
    s_add_u32 s{s_pf}, s{s_pf}, s{s_t1}
    v_lshrrev_b32 v{v_t2}, 2, v0
    v_lshl_add_u32 v{v_pf}, v{v_t2}, 10, v{v_t3}
    v_cmp_gt_u32 vcc, 43, v{v_t2}
    v_mov_b32 v{v_t2}, 0x40000000
    s_nop 0
    v_cndmask_b32 v{v_pf}, v{v_t2}, v{v_pf}, vcc
    s_branch K1_pfy{pf_setup.n}
K1_pfx{pf_setup.n}:
    s_mov_b32 s{sPf}, s{sX}
    s_mov_b32 s{sPf+1}, s{sX+1}
    s_mov_b32 s{sPf+2}, {2048*1024}
    s_lshl_b32 s{s_pf}, s{s_t0}, 16
    s_add_u32 s{s_pf}, s{s_pf}, s{s_t1}
    s_and_b32 s{s_t1}, s2, 6
    s_lshl_b32 s{s_t1}, s{s_t1}, 12
    s_add_u32 s{s_pf}, s{s_pf}, s{s_t1}
    v_bfe_u32 v{v_t2}, v{v_lane}, 2, 3
    v_lshl_add_u32 v{v_pf}, v{v_t2}, 10, v{v_t3}
    v_lshrrev_b32 v{v_t2}, 5, v{v_lane}
    v_lshl_add_u32 v{v_pf}, v{v_t2}, 15, v{v_pf}
K1_pfy{pf_setup.n}:
""")
    pf_setup.n += 1


pf_setup.n = 0


sPq = 92
s_pq, s_pqd = 96, 97
v_pq = 15


def k1_pf_setup(A, opt):
    if not opt.get('k1_pf', 1):
        return
    G = opt.get('k1_pfg', 2)
    A(f"""
    s_lshr_b32 s{s_t0}, s2, 3                   ; jj
    v_lshrrev_b32 v{v_t2}, 4, v{v_lane}
    s_mov_b32 s{sPq+3}, 0x20000
    s_cmp_ge_u32 s{s_w}, 2
    s_cbranch_scc1 K1_pqw{pf_setup.n}
    s_mov_b32 s{sPq}, s{sX}
    s_mov_b32 s{sPq+1}, s{sX+1}
    s_mov_b32 s{sPq+2}, {2048*1024}
    s_lshl_b32 s{s_pq}, s{s_t0}, 16
    s_and_b32 s{s_t1}, s2, 1
    s_lshl_b32 s{s_t1}, s{s_t1}, 1
    s_add_u32 s{s_t1}, s{s_t1}, s{s_w}
    s_lshl_b32 s{s_t1}, s{s_t1}, 14
    s_add_u32 s{s_pq}, s{s_pq}, s{s_t1}
    s_add_u32 s{s_pq}, s{s_pq}, {128*opt.get('k1_pf0', 2)}
    s_mov_b32 s{s_pqd}, {128*G}
    v_and_b32 v{v_t3}, 15, v{v_lane}
    v_lshlrev_b32 v{v_t3}, 10, v{v_t3}
    v_lshl_add_u32 v{v_pq}, v{v_t2}, 7, v{v_t3}
    s_branch K1_pqe{pf_setup.n}
K1_pqw{pf_setup.n}:
    s_cmp_eq_u32 s{s_w}, 2
    s_cselect_b32 s{sPq}, s{sWg}, s{sWu}
    s_cselect_b32 s{sPq+1}, s{sWg+1}, s{sWu+1}
    s_mov_b32 s{sPq+2}, {512*2752}
    s_mul_i32 s{s_pq}, s{s_t0}, {2*2752}
    s_bfe_u32 s{s_t1}, s2, 0x20001
    s_mul_i32 s{s_t1}, s{s_t1}, 768
    s_add_u32 s{s_pq}, s{s_pq}, s{s_t1}
    s_add_u32 s{s_pq}, s{s_pq}, {64*2752*opt.get('k1_pf0', 2)}
    s_mov_b32 s{s_pqd}, {64*2752*G}
    v_and_b32 v{v_t3}, 7, v{v_lane}
    v_lshlrev_b32 v{v_t3}, 7, v{v_t3}
    v_min_u32 v{v_t3}, 764, v{v_t3}
    v_lshlrev_b32 v{v_pq}, 6, v{v_t2}
    v_bfe_u32 v{v_t1}, v{v_lane}, 3, 1
    v_add_u32 v{v_pq}, v{v_pq}, v{v_t1}
    v_mul_u32_u24 v{v_pq}, 2752, v{v_pq}
    v_add_u32 v{v_pq}, v{v_pq}, v{v_t3}
K1_pqe{pf_setup.n}:
    v_cmp_gt_u32 vcc, {G}, v{v_t2}
    s_nop 1
    v_cndmask_b32 v{v_pq}, -1, v{v_pq}, vcc
""")


def k1_pf_load(dst):
    return f"buffer_load_dword {dst}, v{v_pq}, {sr(sPq,4)}, s{s_pq} offen\ns_add_u32 s{s_pq}, s{s_pq}, s{s_pqd}"


def tlb_touch(A, opt, dst):
    if not opt.get('tlb', 1):
        return 0
    A(f"""
    s_load_dwordx2 s[64:65], s[0:1], 72
    s_mov_b32 s{sWs+2}, {WS_USED}
    s_mov_b32 s{sWs+3}, 0x20000
    s_lshl_b32 s{s_t0}, s{s_w}, 21
    buffer_load_dword {dst}, off, {sr(sWs,4)}, s{s_t0}
    v_mov_b32 v{v_t3}, 0
    s_waitcnt lgkmcnt(0)
    global_load_dword {dst}, v{v_t3}, s[64:65]
""")
    return 2


def pf_load():
    return f"buffer_load_dword v{v_pf}, v{v_pf}, {sr(sPf,4)}, s{s_pf} offen"


def gen_k1(A, opt):
    pf_setup.n = 0
    st_aux = opt.get('h_store_aux', '')
    A(f"""
k1_kernel:
    s_cmp_ge_u32 s2, 256
    s_cbranch_scc1 K1_end
    s_load_dwordx2 {sr(sX,2)}, s[0:1], 0
    s_load_dwordx2 {sr(sWg,2)}, s[0:1], 48
    s_load_dwordx2 {sr(sWu,2)}, s[0:1], 56
    s_load_dwordx2 {sr(sWs,2)}, s[0:1], 88
    s_load_dwordx2 {sr(sHr,2)}, s[0:1], 24
    s_load_dwordx2 {sr(sHi,2)}, s[0:1], 32
    s_load_dwordx2 {sr(sPf,2)}, s[0:1], 64
""")
    if opt.get('stamps'):
        A("s_memrealtime s[66:67]")
    stamp(A, opt, 0)
    if opt.get('code_pf', 1):
        A(f"""
    s_getpc_b64 s[{s_t0}:{s_t0+1}]
    v_lshlrev_b32 v6, 7, v0
    s_bfe_u32 s{s_t2}, s2, 0x20003
    s_cmp_lg_u32 s{s_t2}, 0
    s_cbranch_scc1 K1_nopf
    global_load_dword v6, v6, s[{s_t0}:{s_t0+1}]
K1_nopf:
""")
    A(f"""
    v_lshrrev_b32 v{v_t0}, 6, v0
    v_and_b32 v{v_lane}, 63, v0
    s_mov_b32 s{sX+2}, {2048*1024}
    s_mov_b32 s{sX+3}, 0x20000
    v_readfirstlane_b32 s{s_w}, v{v_t0}
    s_mov_b32 s{sWg+2}, {512*2752}
    s_mov_b32 s{sWg+3}, 0x20000
    s_mov_b32 s{sWu+2}, {512*2752}
    s_mov_b32 s{sWu+3}, 0x20000
    s_lshr_b32 s{s_t0}, s2, 3
    s_and_b32 s{s_rb}, s{s_t0}, 7
    s_lshr_b32 s{s_g}, s{s_t0}, 3
    s_add_u32 s{s_t1}, s2, {opt.get('k1_xr', 5)}
    s_and_b32 s{s_t0}, s{s_t1}, 1
    s_lshl_b32 s{s_t0}, s{s_t0}, 3
    s_add_u32 s{s_rb}, s{s_rb}, s{s_t0}
    s_and_b32 s{s_t0}, s{s_t1}, 6
    s_lshl_b32 s{s_t0}, s{s_t0}, 1
    s_add_u32 s{s_g}, s{s_g}, s{s_t0}
    s_lshl_b32 s{s_a}, s{s_rb}, 2
    s_add_u32 s{s_a}, s{s_a}, s{s_w}
    v_lshrrev_b32 v{v_t0}, 3, v{v_lane}
    v_and_b32 v{v_t1}, 7, v{v_lane}
    v_lshrrev_b32 v{v_t2}, 4, v{v_lane}
    v_xor_b32 v{v_t1}, v{v_t1}, v{v_t2}
    v_lshlrev_b32 v{v_t1}, 4, v{v_t1}
    v_lshl_add_u32 v{vXd}, v{v_t0}, 16, v{v_t1}
    v_xor_b32 v{vXd+1}, 64, v{vXd}
    v_add_u32 v{vXd+2}, {2*(8*65536-1024)}, v{vXd}
    v_add_u32 v{vXd+3}, {3*(8*65536-1024)}, v{vXd+1}
    v_add_u32 v{vXd+1}, {8*65536-1024}, v{vXd+1}
    s_mov_b32 s{s_ones}, 0x3f803f80
""")
    D = Asm()
    lds_d = gen_dft(D, opt, st_aux)
    k = D.L.index('K1_dft_main:')
    if opt.get('dft_first', 1):
        A(f"s_cmp_lt_u32 s{s_g}, 14\ns_cbranch_scc1 K1_ffn")
        A.L += D.L[:k]
        A("s_branch K1_dft_main")
        A("K1_ffn:")
        lds_f = gen_ffn(A, opt, st_aux)
        A.L += D.L[k:]
    else:
        A(f"s_cmp_ge_u32 s{s_g}, 14\ns_cbranch_scc1 K1_dft")
        lds_f = gen_ffn(A, opt, st_aux)
        A.L += D.L
    A("K1_end:")
    A("s_endpgm")
    return max(lds_f, lds_d), 428, 256


def gen_ffn(A, opt, st_aux):
    SLOT = 41024
    WIMG = 16384
    UPO = 12320
    EXC = 3 * SLOT
    lds = EXC + 8192
    s_xo, s_wo = 40, 48
    s_mx, s_mg, s_mu, s_ho, s_h1 = 56, 57, 58, 59, 60
    s_ck = 61
    vWd = 12
    vXr = 16
    vWr = 20
    vS, vQ = 24, 26
    vTm = 28
    vSel = 32
    vXf = 36
    vWf = 68
    vC = 92
    acc = 104
    rot = opt.get('k1_rot', 0)

    A(f"s_mul_i32 s{s_t0}, s{s_w}, 192")
    A(f"s_mov_b32 s{s_t1}, 0x15555556")
    for i in range(3):
        A(f"""
    s_add_u32 s{s_t2}, s{s_t0}, {64*i}
    v_add_u32 v{v_t2}, s{s_t2}, v{v_lane}
    v_mul_hi_u32 v{v_t3}, v{v_t2}, s{s_t1}
    v_lshlrev_b32 v{v_t2}, 4, v{v_t2}
    v_mul_u32_u24 v{v_t3}, {2752-192}, v{v_t3}
    v_add_u32 v{vWd+i}, v{v_t2}, v{v_t3}
""")
        if i:
            A(f"v_subrev_u32 v{vWd+i}, {1024*i}, v{vWd+i}")
    if rot == 8:
        A(f"s_lshl_b32 s{s_ck}, s{s_g}, 1\ns_add_u32 s{s_ck}, s{s_ck}, s{s_rb}")
    elif rot == 4:
        A(f"s_add_u32 s{s_ck}, s{s_g}, s{s_rb}\ns_lshl_b32 s{s_ck}, s{s_ck}, 1")
    elif rot == 2:
        A(f"s_add_u32 s{s_ck}, s{s_g}, s{s_rb}\ns_lshl_b32 s{s_ck}, s{s_ck}, 2")
    elif rot == 11:
        A(f"s_add_u32 s{s_ck}, s{s_g}, s{s_rb}\ns_and_b32 s{s_ck}, s{s_ck}, 1")
    elif rot == 13:
        A(f"s_add_u32 s{s_ck}, s{s_g}, s{s_rb}\ns_and_b32 s{s_ck}, s{s_ck}, 3")
    elif rot in (7, 6):
        A(f"s_lshl_b32 s{s_ck}, s{s_g}, 1\ns_add_u32 s{s_ck}, s{s_ck}, s{s_rb}\ns_mul_i32 s{s_t0}, s{s_ck}, {(65536 + rot - 1) // rot}\n"
          f"s_lshr_b32 s{s_t0}, s{s_t0}, 16\ns_mul_i32 s{s_t0}, s{s_t0}, {rot}\ns_sub_u32 s{s_ck}, s{s_ck}, s{s_t0}")
    A(f"""
    s_lshl_b32 s{s_ho}, s{s_a}, 10
    s_mul_i32 s{s_h1}, s{s_g}, 192
    s_lshl_b32 s{s_mx}, s{s_w}, 12
    s_mul_i32 s{s_mg}, s{s_w}, 3072
    s_add_u32 s{s_mu}, s{s_mg}, {WIMG+UPO}
    s_add_u32 s{s_mg}, s{s_mg}, {WIMG}
""")

    def offs(c):
        if rot in (11, 13):
            return [f"s_xor_b32 s{s_t0}, s{s_ck}, {c}",
                    f"s_lshl_b32 s{s_xo+c}, s{s_t0}, 7", f"s_add_u32 s{s_xo+c}, s{s_xo+c}, s{s_ho}",
                    f"s_mul_i32 s{s_wo+c}, s{s_t0}, {64*2752}", f"s_add_u32 s{s_wo+c}, s{s_wo+c}, s{s_h1}"]
        if rot in (7, 6) and c >= 8 - rot:
            return [f"s_add_u32 s{s_t0}, s{s_ck}, {8-rot}",
                    f"s_lshl_b32 s{s_xo+c}, s{s_t0}, 7", f"s_add_u32 s{s_xo+c}, s{s_xo+c}, s{s_ho}",
                    f"s_mul_i32 s{s_wo+c}, s{s_t0}, {64*2752}", f"s_add_u32 s{s_wo+c}, s{s_wo+c}, s{s_h1}",
                    f"s_add_u32 s{s_ck}, s{s_ck}, 1", f"s_cmp_eq_u32 s{s_ck}, {rot}", f"s_cselect_b32 s{s_ck}, 0, s{s_ck}"]
        if rot in (2, 4, 8):
            return [f"s_add_u32 s{s_t0}, s{s_ck}, {c}", f"s_and_b32 s{s_t0}, s{s_t0}, 7",
                    f"s_lshl_b32 s{s_xo+c}, s{s_t0}, 7", f"s_add_u32 s{s_xo+c}, s{s_xo+c}, s{s_ho}",
                    f"s_mul_i32 s{s_wo+c}, s{s_t0}, {64*2752}", f"s_add_u32 s{s_wo+c}, s{s_wo+c}, s{s_h1}"]
        return [f"s_add_u32 s{s_xo+c}, s{s_ho}, {128*c}", f"s_add_u32 s{s_wo+c}, s{s_h1}, {64*2752*c}"]

    def dma_list(c, nop=False):
        slot = (c % 3) * SLOT
        L = []
        for srd, m, v, n, so in ((sX, s_mx, vXd, 4, s_xo + c), (sWg, s_mg, vWd, 3, s_wo + c), (sWu, s_mu, vWd, 3, s_wo + c)):
            L.append(f"s_add_u32 m0, s{m}, {slot}" + ("\ns_nop 0" if nop else ""))
            for i in range(n):
                off = f" offset:{1024*i}" if i else ""
                L.append(f"buffer_load_dwordx4 v{v+i}, {sr(srd,4)}, s{so} offen{off} lds")
        return L

    for x in offs(0):
        A(x)
    A("s_waitcnt lgkmcnt(0)")
    stamp(A, opt, 1)
    vm0 = ['c0'] * 10
    for x in dma_list(0, True):
        A(x)
    G = opt.get('k1_pfg', 2)
    pf0 = opt.get('k1_pf0', 2)
    npq = (8 - pf0 + G - 1) // G if opt.get('k1_pf', 1) else 0
    for x in offs(1) + dma_list(1, True):
        A(x)
    vm0 += ['c1'] * 10
    vm0 += ['t'] * tlb_touch(A, opt, 'v6')
    if npq:
        k1_pf_setup(A, opt)
        if pf0 == 2:
            A(k1_pf_load('v6'))
            vm0.append('p')
    if opt.get('k1_up3'):
        for x in offs(2) + dma_list(2, True):
            A(x)
        vm0 += ['c2'] * 10
    for c in range(3 if opt.get('k1_up3') else 2, 8):
        for x in offs(c):
            A(x)
    A(f"""
    s_mov_b32 s{sWs+2}, {WS_USED}
    s_mov_b32 s{sWs+3}, 0x20000
    v_and_b32 v{v_t0}, 31, v{v_lane}            ; r
    v_lshrrev_b32 v{v_t1}, 5, v{v_lane}         ; h
    v_bfe_u32 v{v_t2}, v{v_lane}, 1, 3          ; (r>>1)&7
    v_xor_b32 v{v_t2}, v{v_t2}, v{v_t1}
    v_lshlrev_b32 v{v_t2}, 4, v{v_t2}
    v_lshl_add_u32 v{v_t2}, v{v_t0}, 7, v{v_t2}
    s_lshr_b32 s{s_t0}, s{s_w}, 1
    s_lshl_b32 s{s_t0}, s{s_t0}, 13
    s_lshl_b32 s{s_t1}, s{s_w}, 5
    s_add_u32 s{s_t0}, s{s_t0}, s{s_t1}
    v_xor_b32 v{vXr}, s{s_t0}, v{v_t2}
    v_xor_b32 v{vXr+1}, 32, v{vXr}
    v_xor_b32 v{vXr+2}, 64, v{vXr}
    v_xor_b32 v{vXr+3}, 96, v{vXr}
    v_bfe_u32 v{v_t0}, v{v_lane}, 2, 2
    v_lshl_add_u32 v{v_t0}, v{v_t1}, 3, v{v_t0}
    v_mul_u32_u24 v{v_t0}, 192, v{v_t0}
    v_and_b32 v{v_t2}, 3, v{v_lane}
    v_lshl_add_u32 v{v_t0}, v{v_t2}, 3, v{v_t0}
    v_bfe_u32 v{v_t2}, v{v_lane}, 4, 1
    v_mul_u32_u24 v{v_t2}, {UPO}, v{v_t2}
    v_add_u32 v{v_t0}, v{v_t0}, v{v_t2}
    s_and_b32 s{s_t1}, s{s_w}, 1
    s_mul_i32 s{s_t1}, s{s_t1}, 96
    s_add_u32 s{s_t1}, s{s_t1}, {WIMG}
""")
    for s in range(4):
        A(f"s_xor_b32 s{s_t0}, s{s_w}, {s}\ns_mul_i32 s{s_t0}, s{s_t0}, 3072\ns_add_u32 s{s_t0}, s{s_t0}, s{s_t1}")
        A(f"v_add_u32 v{vWr+s}, s{s_t0}, v{v_t0}")
    vB2 = 248
    for k in range(8):
        A(f"v_add_u32 v{vB2+k}, {2*SLOT}, v{vXr+k}")
    make_sel(A, vSel, v_t2)
    pf_setup(A, opt)
    for r in range(vS, vS + 4):
        A(f"v_mov_b32 v{r}, 0")
    A(f"""
    s_and_b32 s{s_t0}, s{s_a}, -2
    s_mul_i32 s{s_ho}, s{s_t0}, 86
    s_mul_i32 s{s_t0}, s{s_g}, 6
    s_add_u32 s{s_ho}, s{s_ho}, s{s_t0}
    s_and_b32 s{s_t0}, s{s_w}, 1
    s_mul_i32 s{s_t0}, s{s_t0}, 3
    s_add_u32 s{s_ho}, s{s_ho}, s{s_t0}
    s_lshl_b32 s{s_ho}, s{s_ho}, 10
    s_add_u32 s{s_h1}, s{s_ho}, {86*1024}
""")

    def slot_of(n):
        sl = (n >> 2) % 3
        return (vB2 - vXr, 0) if sl == 2 else (0, sl * SLOT)

    def rd_x(n, t):
        d, o = slot_of(n)
        return f"ds_read_b128 {vr(vXf+8*(n&3)+4*t,4)}, v{vXr+d+(n&3)} offset:{o+4096*t}"

    def rd_w(n, j, p):
        d, o = slot_of(n)
        return f"ds_read_b64_tr_b16 {vr(vWf+12*(n&1)+4*j+2*p,2)}, v{vWr+d+(n&3)} offset:{o+768*p+32*j}"

    def stat_ops(n, t):
        L = []
        for k in range(4):
            x = vXf + 8 * (n & 3) + 4 * t + k
            a = vTm + 2 * (k & 1)
            L += [f"v_lshlrev_b32 v{a}, 16, v{x}", f"v_and_b32 v{a+1}, 0xffff0000, v{x}",
                  f"v_fmac_f32 v{vQ+t}, v{a}, v{a}", f"v_fmac_f32 v{vQ+t}, v{a+1}, v{a+1}"]
        return L

    def mfma(n, j, t):
        d = acc + 16 * (2 * j + t)
        c = '0' if n == 0 else vr(d, 16)
        return f"v_mfma_f32_32x32x16_bf16 {vr(d,16)}, {vr(vWf+12*(n&1)+4*j,4)}, {vr(vXf+8*(n&3)+4*t,4)}, {c}"

    def cs_mfma(n, j):
        c = '0' if n == 0 else vr(vC + 4 * j, 4)
        return f"v_mfma_f32_16x16x32_bf16 {vr(vC+4*j,4)}, {vr(vSel,4)}, {vr(vWf+12*(n&1)+4*j,4)}, {c}"

    vR = 240

    def rs_mfma(n):
        t = n & 1
        c = '0' if n < 2 else vr(vR + 4 * t, 4)
        return f"v_mfma_f32_16x16x32_bf16 {vr(vR+4*t,4)}, {vr(vSel,4)}, {vr(vXf+8*((n-t)&3)+4*t,4)}, {c}"

    P = sched.Prog()
    P.wait(vm=['c0'])
    P.i("s_barrier")
    if opt.get('stamps'):
        P.i("s_memtime s[74:75]")

    def rtags(n):
        return [(f'x{n}_0', rd_x(n, 0)), (f'w{n}_0', rd_w(n, 0, 0)), (f'w{n}_0', rd_w(n, 0, 1)), (f'x{n}_1', rd_x(n, 1)),
                (f'w{n}_1', rd_w(n, 1, 0)), (f'w{n}_1', rd_w(n, 1, 1)), (f'w{n}_2', rd_w(n, 2, 0)), (f'w{n}_2', rd_w(n, 2, 1))]
    for tag, t in rtags(0):
        P.ds(tag, t)
    anchors = []
    first = {}
    barpos = opt.get('k1_barpos', 1)
    bar_at = {}
    for n in range(32):
        c, s = n >> 2, n & 3
        first[n] = len(anchors)
        for g in range(6):
            j, t = g >> 1, g & 1
            a = dict(text=mfma(n, j, t), cap=25)
            if s == 3 and c < 7 and g == barpos:
                def pre(P, c=c):
                    P.wait(lg='all', vm=[f'c{c+1}'] if not (opt.get('x_nodma') and c >= 1) else None)
                    if not opt.get('x_nobar'):
                        P.i("s_barrier")
                    if opt.get('stamps') == 2:
                        P.i(f"s_memtime s[{76+2*c}:{77+2*c}]")
                    elif c == 6 and opt.get('stamps'):
                        P.i("s_memtime s[76:77]")
                a.update(pre=pre, precost=10)
                bar_at[c] = len(anchors)
            elif g == 0:
                a.update(pre=lambda P, n=n: P.wait(lg=[f'x{n}_0', f'w{n}_0', f'x{n}_1', f'w{n}_1']), precost=5)
            elif g == 4 and not (s == 3 and c < 7 and barpos < 4):
                a.update(pre=lambda P, n=n: P.wait(lg=[f'w{n}_2']), precost=5)
            anchors.append(a)
            if s < 2 and t == 1:
                anchors.append(dict(text=cs_mfma(n, j), cap=8))
            if g == (2 if s < 2 else 3):
                anchors.append(dict(text=rs_mfma(n), cap=8))
    first[32] = len(anchors)
    last = lambda n: first[n + 1] - 1
    st_rd, st_va, st_dm = [], [], []
    for n in range(31):
        e = bar_at[n >> 2] if (n & 3) == 3 else first[n]
        dls = [1, 2, 2, 3, 4, 4, 99, 99]
        for (tag, t), dl in zip(rtags(n + 1), dls):
            st_rd.append(('ds', tag, t, e, min(max(first[n] + dl, e + (dl + 1) // 2), last(n))))
    for n in range(0, 32, 2):
        ops = stat_ops(n, 0) + stat_ops(n, 1)
        if opt.get('x_nostats'):
            ops = []
        lo, hi = first[n], last(min(n + 2, 31))
        for k, t in enumerate(ops):
            st_va.append(('i', None, t, lo, hi))
    lead = opt.get('k1_lead', 0)
    span = opt.get('k1_span', 26)
    for q in range(3 if opt.get('k1_up3') else 2, 8):
        L = dma_list(q)
        e0 = (bar_at[q - 3] if q >= 3 else 0) + lead
        items = []
        for t in L:
            if t.startswith('s_add'):
                items.append(('i', None, t))
            else:
                items.append(('vm', f'c{q}', t))
        for m in range(1 if pf0 == 2 else 0, npq):
            if max(3 if opt.get('k1_up3') else 2, pf0 + G * m + opt.get('k1_pfo', -1)) == q:
                ld, inc = k1_pf_load('v6').split('\n')
                st_dm.append(('vm', 'p', ld, e0, e0 + 1))
                st_dm.append(('i', None, inc + ' ', e0, e0 + 2))
        k = 0
        for kind, tag, t in items:
            e = e0 + span * k // 10
            if kind == 'i':
                st_dm.append((kind, tag, t, max(e - 1, e0), e + 1))
            else:
                prev_m0 = st_dm and ' m0,' in st_dm[-1][2]
                st_dm.append((kind, tag, ("s_nop 0 ;m0\n" if prev_m0 else "") + t, e, e + 3, opt.get('k1_vmcost', 6)))
                k += 1
        if q == opt.get('k2_pf_q', 7) and opt.get('k2_pf', 1):
            st_dm.append(('vm', 'pf', pf_load(), e0 + span, e0 + span + 3))
    if opt.get('x_nodma'):
        st_dm = []
    if opt.get('x_oob'):
        A(f's_mov_b32 s{sX+2}, 0\ns_mov_b32 s{sWg+2}, 0\ns_mov_b32 s{sWu+2}, 0')
    over = sched.place(P, anchors, [st_rd, st_dm, st_va], slack=opt.get('k1_slack'))
    if opt.get('verbose'): print('ffn loop slack/est', over)
    P.emit(A, vm0=vm0)
    if opt.get('stamps') == 1: stamp(A, opt, 4)
    vE = vXf
    A(f"""
    v_lshlrev_b32 v{v_t0}, 4, v{v_lane}
    s_lshl_b32 s{s_t0}, s{s_w}, 11
    s_add_u32 s{s_t0}, s{s_t0}, {EXC}
    v_add_u32 v{v_t1}, s{s_t0}, v{v_t0}
    v_mov_b32 v{vC+1}, v{vC+4}
    v_mov_b32 v{vC+2}, v{vC+8}
    v_mov_b32 v{vS}, v{vR}
    v_mov_b32 v{vS+1}, v{vR+4}
    ds_write_b128 v{v_t1}, {vr(vS,4)}
    ds_write_b128 v{v_t1}, {vr(vC,4)} offset:1024
    v_xor_b32 v{v_t2}, {2048}, v{v_t1}
    v_xor_b32 v{v_t3}, {4096}, v{v_t1}
""")
    vmu = [vE + 8, vE + 12]
    for t in range(2):
        for k in range(1, 4):
            A(f"v_mov_b32 v{vmu[t]+k}, 0")
    A(f"""
    s_waitcnt lgkmcnt(0)
    s_barrier
    ds_read_b128 {vr(vE,4)}, v{v_t2}
    ds_read_b128 {vr(vE+4,4)}, v{v_t3} offset:1024
    s_waitcnt lgkmcnt(1)
    v_pk_add_f32 {vr(vS,2)}, {vr(vS,2)}, {vr(vE,2)}
    v_pk_add_f32 {vr(vQ,2)}, {vr(vQ,2)}, {vr(vE+2,2)}
""")
    vk1, vk3, vci, vrs = [200, 208], [202, 210], [204, 212], [206, 214]
    f0 = stats_finalize(vS, vQ, vmu[0], vk1[0], vk3[0], vci[0], vrs[0], vTm, vTm + 1)
    f1 = stats_finalize(vS + 1, vQ + 1, vmu[1], vk1[1], vk3[1], vci[1], vrs[1], vTm + 2, vTm + 3)
    for a, b in zip(f0, f1):
        if a.strip().startswith('s_nop'):
            if 's_nop 1' in a:
                A("s_nop 0")
            continue
        A(a); A(b)
    A("s_waitcnt lgkmcnt(0)")
    for j in range(3):
        A(f"v_add_f32 v{vC+j}, v{vC+j}, v{vE+4+j}")
    for j in range(3):
        for x in split_hilo(vWf + 4 * j, vC + j, vTm):
            A(x)
    A("s_nop 1")
    for j in range(3):
        for t in range(2):
            d = acc + 16 * (2 * j + t)
            A(f"v_mfma_f32_32x32x16_bf16 {vr(d,16)}, {vr(vWf+4*j,4)}, {vr(vmu[t],4)}, {vr(d,16)}")
    A("s_nop 7")
    if opt.get('stamps') == 1: stamp(A, opt, 5)
    k = 0
    for j in range(3):
        for t in range(2):
            tmp = vXf + 16 + 8 * (k & 1)
            out = 216 + 4 * k
            for x in gelu_unit(acc + 16 * (2 * j + t), tmp, out, vk1[t], vk3[t], vci[t]):
                A(x)
            A(f"buffer_store_dwordx4 {vr(out,4)}, v{v_t0}, {sr(sWs,4)}, s{s_h1 if t else s_ho} offen offset:{1024*j} {st_aux}")
            k += 1
    if opt.get('stamps'):
        if opt.get('stamps') == 2:
            stamp(A, opt, 10)
            emit_stamp_store(A, 11, sWs, 0x1000000, s_w, v_lane)
        else:
            stamp(A, opt, 6)
            A("s_waitcnt vmcnt(0)")
            stamp(A, opt, 7)
            emit_stamp_store(A, 8, sWs, 0x1000000, s_w, v_lane)
    A("s_endpgm")
    return lds


def gen_dft(A, opt, st_aux):
    global v_pq
    XS = 32768
    H0 = 65536
    WL = H0 + 32768
    SC = H0 + 65536
    lds = H0 + 3 * 32768
    t_aux = opt.get('t_store_aux', st_aux)
    s_par, s_xo, s_ho, s_mx, s_mh = 40, 41, 42, 43, 44
    s_sig = 46
    s_wo, s_mw = 48, 49
    s_neg, s_so = 50, 51
    s_st = 52
    s_xh = 45
    vHd = 12
    vRx = 16
    vRb = 20
    vQ = 24
    vWl = 26
    vSel = 28
    vXb = 32
    vF = 48
    vT = 56
    vB = 64
    acc = 128
    aS = 128
    aC = 132
    aP = 164
    v_pq_save = v_pq
    v_pq = 0

    A("K1_dft:")
    A(f"""
    s_sub_u32 s{s_par}, s{s_g}, 14
    s_mov_b32 s{sHr+2}, {512*1024}
    s_mov_b32 s{sHr+3}, 0x20000
    s_mov_b32 s{sHi+2}, {512*1024}
    s_mov_b32 s{sHi+3}, 0x20000
    s_lshl_b32 s{s_t0}, s{s_w}, 6
    s_add_u32 s{s_t0}, s{s_t0}, s{s_par}
    v_lshlrev_b32 v{v_t2}, 1, v{v_t0}
    v_add_u32 v{v_t2}, s{s_t0}, v{v_t2}
    v_lshl_add_u32 v{vHd+2}, v{v_t2}, 10, v{v_t1}
    v_cmp_eq_u32 vcc, 0, v{v_t2}
    v_xor_b32 v{vHd+1}, 64, v{vHd+2}
    v_add_u32 v{v_t3}, {256*1024}, v{vHd+2}
    v_cndmask_b32 v{vHd}, v{vHd+2}, v{v_t3}, vcc
    v_add_u32 v{vHd+3}, {45*1024}, v{vHd+1}
    v_add_u32 v{vHd+1}, {15*1024}, v{vHd+1}
    v_add_u32 v{vHd+2}, {30*1024}, v{vHd+2}
    s_lshl_b32 s{s_xo}, s{s_a}, 10
    s_add_u32 s{s_xh}, s{s_xo}, 512
    s_lshl_b32 s{s_mx}, s{s_w}, 12
    s_lshl_b32 s{s_mh}, s{s_w}, 13
    s_add_u32 s{s_mh}, s{s_mh}, {H0}
""")
    drot = opt.get('dft_rot', 3)
    if drot == 1:
        A(f"s_lshl_b32 s{s_t0}, s{s_par}, 1\ns_add_u32 s{s_t0}, s{s_t0}, s{s_rb}\ns_lshl_b32 s{s_t0}, s{s_t0}, 7")
        for k in range(4):
            A(f"s_add_u32 s{s_st+k}, s{s_t0}, {128*k}\ns_and_b32 s{s_st+k}, s{s_st+k}, 384")
    elif drot == 11:
        A(f"s_add_u32 s{s_t0}, s{s_par}, s{s_rb}\ns_and_b32 s{s_t0}, s{s_t0}, 1\ns_lshl_b32 s{s_st}, s{s_t0}, 7")
        for k in range(1, 4):
            A(f"s_xor_b32 s{s_st+k}, s{s_st}, {128*k}")
    else:
        A(f"s_mov_b32 s{s_st}, 0")

    def dma_x(s):
        L = []
        slot = (s & 1) * XS
        for half in range(2):
            L.append(f"s_add_u32 m0, s{s_mx}, {slot+half*16384}\ns_add_u32 s{s_t2}, s{s_xh if half else s_xo}, s{s_st+s}\n"
                     f"buffer_load_dwordx4 v{vXd}, {sr(sX,4)}, s{s_t2} offen lds")
            for i in range(1, 4):
                L.append(f"buffer_load_dwordx4 v{vXd+i}, {sr(sX,4)}, s{s_t2} offen offset:{1024*i} lds")
        return L

    def dma_h(s):
        L = []
        slot = (s % 3) * 32768
        for mat, srd in enumerate((sHr, sHi)):
            L.append(f"s_add_u32 m0, s{s_mh}, {slot+mat*4096}\ns_nop 0\n"
                     f"buffer_load_dwordx4 v{vHd}, {sr(srd,4)}, s{s_st+s} offen lds")
            for i in range(1, 4):
                L.append(f"buffer_load_dwordx4 v{vHd+i}, {sr(srd,4)}, s{s_st+s} offen offset:{1024*i} lds")
        return L

    def dma_w():
        L = []
        for i in range(4):
            L.append(f"s_lshl_b32 s{s_ho}, s{s_st+i}, 3\ns_add_u32 m0, s{s_mw}, s{s_ho}\ns_mul_i32 s{s_t2}, s{s_st+i}, 688\n"
                     f"s_add_u32 s{s_t2}, s{s_t2}, s{s_wo}\nbuffer_load_dwordx4 v{vWl}, {sr(sWg,4)}, s{s_t2} offen lds")
            L.append(f"s_add_u32 m0, m0, 16384\ns_nop 0\nbuffer_load_dwordx4 v{vWl+1}, {sr(sWu,4)}, s{s_t2} offen lds")
        return L

    vm0 = []
    A("s_waitcnt lgkmcnt(0)")
    stamp(A, opt, 1)
    for x in dma_x(0): A(x)
    vm0 += ['x0'] * 8
    for x in dma_h(0): A(x)
    vm0 += ['h0'] * 8
    A("K1_dft_main:")
    if drot == 0:
        for k in range(1, 4):
            A(f"s_mov_b32 s{s_st+k}, {128*k}")
    elif drot == 3:
        A(f"s_add_u32 s{s_t0}, s{s_rb}, s{s_par}\ns_mul_i32 s{s_t1}, s{s_t0}, 21846\ns_lshr_b32 s{s_t1}, s{s_t1}, 16\n"
          f"s_mul_i32 s{s_t1}, s{s_t1}, 3\ns_sub_u32 s{s_t0}, s{s_t0}, s{s_t1}")
        for k in range(1, 4):
            A(f"s_add_u32 s{s_t0}, s{s_t0}, 1\ns_lshl_b32 s{s_st+k}, s{s_t0}, 7\ns_cmp_eq_u32 s{s_t0}, 3\ns_cselect_b32 s{s_t0}, 0, s{s_t0}")
    pf_setup(A, opt)
    G = opt.get('k1_pfg', 2)
    pf0 = opt.get('k1_pf0', 2)
    npq = (8 - pf0 + G - 1) // G if opt.get('k1_pf', 1) else 0
    for x in dma_x(1): A(x)
    vm0 += ['x1'] * 8
    vm0 += ['t'] * tlb_touch(A, opt, 'v6')
    if npq:
        pf_setup.n -= 1
        k1_pf_setup(A, opt)
        pf_setup.n += 1
        if pf0 == 2:
            A(k1_pf_load('v6'))
            vm0.append('p')
    A(f"""
    v_lshrrev_b32 v{v_t0}, 1, v{v_lane}
    v_and_b32 v{v_t1}, 1, v{v_lane}
    v_lshlrev_b32 v{v_t1}, 4, v{v_t1}
    v_mul_u32_u24 v{vWl}, 2752, v{v_t0}
    v_add_u32 v{vWl}, v{vWl}, v{v_t1}
    v_xor_b32 v{v_t0}, 4, v{v_t0}
    v_mul_u32_u24 v{vWl+1}, 2752, v{v_t0}
    v_add_u32 v{vWl+1}, v{vWl+1}, v{v_t1}
    s_mul_i32 s{s_wo}, s{s_w}, {128*2752}
    s_lshl_b32 s{s_t0}, s{s_par}, 5
    s_add_u32 s{s_wo}, s{s_wo}, s{s_t0}
    s_add_u32 s{s_wo}, s{s_wo}, 2688
    s_add_u32 s{s_mw}, s{s_mx}, {WL}
    s_mov_b32 s{sWs+2}, {WS_USED}
    s_mov_b32 s{sWs+3}, 0x20000
    s_cmp_eq_u32 s{s_par}, 0
    s_cselect_b32 s{s_sig}, 1.0, -1.0
    s_mov_b32 s{s_neg}, 0x80008000
    v_and_b32 v{v_t0}, 31, v{v_lane}            ; r
    v_lshrrev_b32 v{v_t1}, 5, v{v_lane}         ; h
    v_bfe_u32 v{v_t2}, v{v_lane}, 1, 3
    v_xor_b32 v{v_t2}, v{v_t2}, v{v_t1}
    v_lshlrev_b32 v{v_t2}, 4, v{v_t2}
    v_lshl_add_u32 v{v_t2}, v{v_t0}, 7, v{v_t2}
    v_add_u32 v{vRx}, s{s_mx}, v{v_t2}
    v_xor_b32 v{vRx+1}, 32, v{vRx}
    v_xor_b32 v{vRx+2}, 64, v{vRx}
    v_xor_b32 v{vRx+3}, 96, v{vRx}
    v_add_u32 v{vRb}, {H0}, v{v_t2}
    v_xor_b32 v{vRb+1}, 32, v{vRb}
    v_xor_b32 v{vRb+2}, 64, v{vRb}
    v_xor_b32 v{vRb+3}, 96, v{vRb}
""")
    make_sel(A, vSel, v_t2)
    A(f"v_lshlrev_b32 v{v_t2}, 2, v{v_t1}\nv_mul_u32_u24 v{v_t2}, v{v_t2}, v{v_t0}\nv_lshlrev_b32 v{v_t3}, 2, v{v_t0}\ns_mov_b32 s{s_t0}, {hex(f2u(1.0/32))}")
    for mp in range(4):
        for k in range(4):
            A(f"""
    v_and_b32 v{vT+k}, 31, v{v_t2}
    v_add_u32 v{v_t2}, v{v_t2}, v{v_t0}
    v_cvt_f32_u32 v{vT+k}, v{vT+k}
    v_mul_f32 v{vT+k}, s{s_t0}, v{vT+k}
    v_sin_f32 v{vT+4+k}, v{vT+k}
    v_cos_f32 v{vT+k}, v{vT+k}
""")
        A(f"v_add_u32 v{v_t2}, v{v_t2}, v{v_t3}")
        for k in range(2):
            A(f"""
    v_cvt_pk_bf16_f32 v{vT+2*k}, v{vT+2*k}, v{vT+2*k+1}
    v_cvt_pk_bf16_f32 v{vT+4+2*k}, v{vT+4+2*k}, v{vT+4+2*k+1}
    v_accvgpr_write_b32 a{aC+2*mp+k}, v{vT+2*k}
    v_accvgpr_write_b32 a{aP+2*mp+k}, v{vT+4+2*k}
    v_xor_b32 v{vT+4+2*k}, s{s_neg}, v{vT+4+2*k}
    v_accvgpr_write_b32 a{aC+8+2*mp+k}, v{vT+4+2*k}
""")

    def rd_x(n):
        ks, b, o = n & 3, n & 1, ((n >> 2) & 1) * XS
        return [f"ds_read_b128 {vr(vXb+8*b,4)}, v{vRx+ks} offset:{o}",
                f"ds_read_b128 {vr(vXb+8*b+4,4)}, v{vRx+ks} offset:{o+16384}",
                f"ds_read_b128 {ar(4*n,4)}, v{vRx+ks} offset:{o}",
                f"ds_read_b128 {ar(64+4*n,4)}, v{vRx+ks} offset:{o+16384}"]

    def rd_b(n):
        ks, b, o = n & 3, n & 1, 32768 if (n >> 2) == 1 else 0
        return [f"ds_read_b128 {vr(vB+32*b+4*j,4)}, v{vRb+ks} offset:{o+4096*j}" for j in range(8)]

    def fold(n):
        b = n & 1
        lo, hi, out = vXb + 8 * b, vXb + 8 * b + 4, vF + 4 * b
        L = []
        for k in range(4):
            t = vT + 4 * (k & 1)
            L += [f"v_lshlrev_b32 v{t}, 16, v{lo+k}",
                  f"v_and_b32 v{t+1}, 0xffff0000, v{lo+k}",
                  f"v_lshlrev_b32 v{t+2}, 16, v{hi+k}",
                  f"v_and_b32 v{t+3}, 0xffff0000, v{hi+k}",
                  f"v_fmac_f32 v{t}, s{s_sig}, v{t+2}",
                  f"v_fmac_f32 v{t+1}, s{s_sig}, v{t+3}",
                  f"v_cvt_pk_bf16_f32 v{out+k}, v{t}, v{t+1}"]
        return L

    aQ = 148

    def sqsum(n, half):
        c = '0' if n == 0 and half == 0 else ar(aQ, 16)
        x = vr(vXb + 8 * (n & 1) + 4 * half, 4)
        return f"v_mfma_f32_32x32x16_bf16 {ar(aQ,16)}, {x}, {x}, {c}"

    def rowsum(n, half):
        c = '0' if n == 0 and half == 0 else ar(aS, 4)
        return f"v_mfma_f32_16x16x32_bf16 {ar(aS,4)}, {vr(vSel,4)}, {vr(vXb+8*(n&1)+4*half,4)}, {c}"

    P = sched.Prog()
    P.wait(vm=['x0'])
    for n in (0, 1):
        for x in rd_x(n): P.ds(f'x{n}', x)
    P.wait(lg=['x0'])
    P.i(rowsum(0, 0)); P.i(rowsum(0, 1)); P.i(sqsum(0, 0)); P.i(sqsum(0, 1))
    for x in fold(0): P.i(x)
    P.wait(vm=['h0'])
    P.i("s_barrier")
    if opt.get('stamps'):
        P.i("s_memtime s[74:75]")
    for j, x in enumerate(rd_b(0)): P.ds(f'b0_{j>>2}', x)
    anchors, first, bar_at = [], {}, {}
    for n in range(16):
        s, ks, b = n >> 2, n & 3, n & 1
        first[n] = len(anchors)
        for j in range(8):
            c = '0' if n == 0 else vr(acc + 16 * j, 16)
            a = dict(text=f"v_mfma_f32_32x32x16_bf16 {vr(acc+16*j,16)}, {vr(vF+4*b,4)}, {vr(vB+32*b+4*j,4)}, {c}", cap=25)
            if j == 0:
                def pre(P, n=n):
                    vmw = [f'x{(n>>2)+1}'] if (n & 3) == 2 and n < 12 else None
                    P.wait(lg=[f'b{n}_0', f'b{n}_1'] + ([f'x{n+1}'] if n < 15 else []), vm=vmw)
                    P.i("s_nop 1")
                    if opt.get('stamps') == 2 and vmw:
                        P.i(f"s_memtime s[{76+4*(n>>2)}:{77+4*(n>>2)}]")
                a.update(pre=pre, precost=10)
            elif j == 1 and ks == 3 and s < 3:
                def pre(P, s=s):
                    P.wait(lg='all', vm=[f'h{s+1}'])
                    P.i("s_barrier")
                    if opt.get('stamps') == 2:
                        P.i(f"s_memtime s[{78+4*s}:{79+4*s}]")
                a.update(pre=pre, precost=10)
                bar_at[s] = len(anchors)
            anchors.append(a)
            if j in (2, 5) and n < 15:
                anchors.append(dict(text=rowsum(n + 1, 0 if j == 2 else 1), cap=8))
                anchors.append(dict(text=sqsum(n + 1, 0 if j == 2 else 1), cap=25))
    first[16] = len(anchors)
    last = lambda n: first[n + 1] - 1
    big = {n: [g for g in range(first[n], first[n + 1]) if anchors[g]['cap'] > 10] for n in range(16)}
    st_rd, st_va, st_dm = [], [], []
    for n in range(15):
        e = bar_at[n >> 2] if (n & 3) == 3 else first[n]
        if (n & 3) == 3 and n >= 7:
            d = 65536 if n == 7 else (-65536) & 0xffffffff
            for r in range(4):
                st_rd.append(('i', None, f"v_add_u32 v{vRb+r}, {d}, v{vRb+r}", e - 1 if r else e - 1, e + (r > 0)))
        for j, x in enumerate(rd_b(n + 1)):
            st_rd.append(('ds', f'b{n+1}_{j>>2}', x, big[n][(e > first[n]) + j // 2], last(n) - 3))
        if n + 2 < 16:
            for j, x in enumerate(rd_x(n + 2)):
                st_rd.append(('ds', f'x{n+2}', x, big[n][(e > first[n]) + 4 + j // 2], last(n) - 2))
        fl = fold(n + 1)
        for k, t in enumerate(fl):
            st_va.append(('i', None, t, first[n], last(n)))

    def add_dm(L, tag, lo, hi):
        for k, t in enumerate(L):
            e = lo + (hi - lo) * k // len(L)
            st_dm.append(('vm', tag, t, e, e + 2))
    pq = [k1_pf_load('v6').split('\n') for _ in range(max(0, npq - (pf0 == 2)))]

    def add_pq(at):
        if pq:
            ld, inc = pq.pop(0)
            st_dm.append(('vm', 'p', ld, at, at + 2))
            st_dm.append(('i', None, inc, at, at + 3))
    add_dm(dma_h(1), 'h1', 0, first[1] + 2)
    add_pq(first[1] + 2)
    add_dm(dma_x(2), 'x2', first[2], first[3] + 4)
    add_pq(first[3] + 4)
    add_dm(dma_h(2), 'h2', first[3] + 5, first[5])
    add_pq(first[5])
    add_dm(dma_x(3), 'x3', first[6], first[7] + 4)
    add_dm(dma_h(3), 'h3', first[7] + 5, first[9])
    while pq:
        add_pq(first[9])
    add_dm(dma_w(), 'w', first[9] + 1, first[opt.get('dft_wend', 15)])
    if opt.get('k2_pf', 1):
        st_dm.append(('vm', 'pf', pf_load(), first[15], first[15] + 4))
    if opt.get('d_oob'):
        A(f's_mov_b32 s{sX+2}, 0\ns_mov_b32 s{sWg+2}, 0\ns_mov_b32 s{sWu+2}, 0\ns_mov_b32 s{sHr+2}, 0\ns_mov_b32 s{sHi+2}, 0')
    if opt.get('d_nova'):
        st_va = []
    if opt.get('d_noagpr'):
        st_rd = [f for f in st_rd if ' a[' not in f[2]]
    r = sched.place(P, anchors, [st_rd, st_dm, st_va], slack=opt.get('dft_slack'))
    if opt.get('verbose'): print('dft loop slack/est', r)
    if opt.get('stamps'):
        P.i("s_memtime s[76:77]" if opt['stamps'] == 1 else "s_memtime s[88:89]")

    vS = vT + 2
    vmu, vk1, vk3, vci, vrs = vF, 8, 12, 14, vT
    vWr = vRb
    vCw = vB + 32
    vC = vQ
    vNS = vXb
    P.i(f"""
    v_bfe_u32 v{v_t2}, v{v_lane}, 2, 2
    v_lshl_add_u32 v{v_t2}, v{v_t1}, 3, v{v_t2}
    v_lshlrev_b32 v{v_t2}, 5, v{v_t2}
    v_and_b32 v{vWr+1}, 3, v{v_lane}
    v_lshl_add_u32 v{v_t2}, v{vWr+1}, 3, v{v_t2}
    v_bfe_u32 v{vWr+1}, v{v_lane}, 4, 1
    v_mul_u32_u24 v{vWr+1}, {16384+128}, v{vWr+1}
    v_add_u32 v{v_t2}, v{v_t2}, v{vWr+1}
    v_add_u32 v{vWr}, {WL}, v{v_t2}
    v_xor_b32 v{vWr+1}, 128, v{vWr}
    v_add_u32 v{vWr+2}, s{s_mx}, v{vWr}
    v_add_u32 v{vWr+3}, s{s_mx}, v{vWr+1}
    v_accvgpr_read_b32 v{vS}, a{aS}
""")
    vD = vB
    for r in range(16):
        P.i(f"v_accvgpr_read_b32 v{vD+r}, a{aQ+r}")
    P.i(f"""
    v_and_b32 v{v_t3}, 1, v{v_lane}
    v_cmp_eq_u32 vcc, 1, v{v_t3}
    v_and_b32 v{v_t3}, 2, v{v_lane}
    v_cmp_eq_u32 s[62:63], 2, v{v_t3}
""")
    for r in range(0, 16, 2):
        P.i(f"v_cndmask_b32 v{vD+r}, v{vD+r}, v{vD+r+1}, vcc")
    P.i(f"v_and_b32 v{v_t3}, 8, v{v_lane}\nv_cmp_eq_u32 vcc, 8, v{v_t3}")
    for r in range(0, 16, 4):
        P.i(f"v_cndmask_b32 v{vD+r}, v{vD+r}, v{vD+r+2}, s[62:63]")
    P.i(f"""
    v_and_b32 v{v_t3}, 16, v{v_lane}
    v_cmp_eq_u32 s[62:63], 16, v{v_t3}
    v_cndmask_b32 v{vD}, v{vD}, v{vD+4}, vcc
    v_cndmask_b32 v{vD+8}, v{vD+8}, v{vD+12}, vcc
    v_bfe_u32 v{v_t3}, v{v_lane}, 2, 1
    v_cmp_eq_u32 vcc, v{v_t3}, v{v_t1}
    v_cndmask_b32 v{vD}, v{vD}, v{vD+8}, s[62:63]
    s_nop 0
    v_cndmask_b32 v{vQ}, 0, v{vD}, vcc
""")
    P.wait(vm=['w'])
    if opt.get('stamps') == 2:
        P.i("s_memtime s[90:91]")
    for kk in range(8):
        for p in range(2):
            P.ds(f'cw{kk}', f"ds_read_b64_tr_b16 {vr(vCw+4*kk+2*p,2)}, v{vWr+2+p} offset:{512*kk}")
        if kk == 5:
            P.wait(lg=['cw1'])
    for x in stats_finalize(vS, vQ, vmu, vk1, vk3, vci, vrs, v_t3, v_t2): P.i(x)
    vRs = vB
    P.i(f"""
    s_add_u32 s{s_t0}, s{s_mx}, {SC}
    v_lshl_add_u32 v{v_t2}, v{v_lane}, 2, s{s_t0}
    v_lshl_add_u32 v{v_t3}, v{v_t1}, 4, s{s_t0}
""")
    P.ds('rsw', f"ds_write_b32 v{v_t2}, v{vrs}")
    P.i(f"v_mov_b32 v{vmu+1}, 0\nv_mov_b32 v{vmu+2}, 0\nv_mov_b32 v{vmu+3}, 0")
    P.wait(lg=['rsw'])
    for q in range(4):
        P.ds('rs', f"ds_read_b128 {vr(vRs+4*q,4)}, v{v_t3} offset:{32*q}")
    for kk in range(8):
        c = '0' if kk == 0 else vr(vC, 4)
        P.i(f"v_mfma_f32_16x16x32_bf16 {vr(vC,4)}, {vr(vSel,4)}, {vr(vCw+4*kk,4)}, {c}")
    vEx = vRx
    P.i(f"""
    v_lshlrev_b32 v{v_t3}, 4, v{v_lane}
    v_add_u32 v{vEx}, s{s_mx}, v{v_t3}
""")
    P.i("s_nop 5")
    P.ds('csw', f"ds_write_b32 v{v_t2}, v{vC} offset:1024")
    P.wait(lg=['rs'])

    def scale(T):
        L = []
        for c in (acc + 32 * T, acc + 32 * T + 16):
            for k in range(0, 16, 2):
                L.append(f"v_pk_mul_f32 {vr(c+k,2)}, {vr(c+k,2)}, {vr(vRs+k,2)}")
            for k in range(8):
                L.append(f"v_cvt_pk_bf16_f32 v{c+k}, v{c+2*k}, v{c+2*k+1}")
        return L

    def stage1(T, r1, r2):
        fa, fb = acc + 32 * T, acc + 32 * T + 16
        M = "v_mfma_f32_32x32x16_bf16"
        return [f"{M} {vr(r1,16)}, {ar(aC,4)}, {vr(fa,4)}, 0",
                f"{M} {vr(r2,16)}, {ar(aC,4)}, {vr(fb,4)}, 0",
                f"{M} {vr(r1,16)}, {ar(aC+4,4)}, {vr(fa+4,4)}, {vr(r1,16)}",
                f"{M} {vr(r2,16)}, {ar(aC+4,4)}, {vr(fb+4,4)}, {vr(r2,16)}",
                f"{M} {vr(r1,16)}, {ar(aP,4)}, {vr(fb,4)}, {vr(r1,16)}",
                f"{M} {vr(r2,16)}, {ar(aC+8,4)}, {vr(fa,4)}, {vr(r2,16)}",
                f"{M} {vr(r1,16)}, {ar(aP+4,4)}, {vr(fb+4,4)}, {vr(r1,16)}",
                f"{M} {vr(r2,16)}, {ar(aC+12,4)}, {vr(fa+4,4)}, {vr(r2,16)}"]

    def pub(T, r1, r2, e, dl):
        L = []
        for q in range(4):
            for r in range(4 * q, 4 * q + 4):
                L.append(('i', None, f"v_cvt_pk_bf16_f32 v{r1+r}, v{r1+r}, v{r2+r}", e, dl))
            L.append(('ds', f'p{T}', f"ds_write_b128 v{vEx}, {vr(r1+4*q,4)} offset:{16384*T+1024*q}", e, dl))
        return L

    def out_ops(Tp, regs, e, dl):
        L = []
        for qq in range(2):
            for w2 in range(4):
                L.append(('ds', f'o{Tp}_{qq}', f"ds_read_b128 {vr(regs+16*qq+4*w2,4)}, v{vOr} offset:{16384*Tp+4096*w2+1024*qq}", e, dl))
        for qq in range(2):
            b0 = regs + 16 * qq
            L.append(('w', [f'o{Tp}_{qq}'], None, e, dl))
            for i in range(4):
                for j in range(i + 1, 4):
                    L.append(('i', None, f"v_swap_b32 v{b0+4*i+j}, v{b0+4*j+i}", e, dl, 10))
            for r in range(4):
                L.append(('vm', 'st', f"s_add_u32 s{s_t0}, s{s_so}, {(8*qq+r)*UST+Tp*8192}\n"
                          f"buffer_store_dwordx4 {vr(b0+4*r,4)}, v{vOs}, {sr(sWs,4)}, s{s_t0} offen {t_aux}", e, dl, 25))
        return L

    vOr, vOs = vRx + 1, vRx + 2
    for x in scale(0) + scale(1): P.i(x)
    P.i(f"""
    s_lshr_b32 s{s_t1}, s{s_w}, 1
    s_and_b32 s{s_t2}, s{s_w}, 1
    s_lshl_b32 s{s_t0}, s{s_t1}, 14
    s_lshl_b32 s{s_so}, s{s_t2}, 11
    s_add_u32 s{s_t0}, s{s_t0}, s{s_so}
    v_add_u32 v{vOr}, s{s_t0}, v{v_t3}
    v_lshlrev_b32 v{vOs}, 4, v{v_t0}
    v_mul_u32_u24 v{vT}, {4*UST}, v{v_t1}
    v_add_u32 v{vOs}, v{vOs}, v{vT}
    s_lshl_b32 s{s_so}, s{s_par}, 15
    s_lshl_b32 s{s_t1}, s{s_t1}, 13
    s_add_u32 s{s_so}, s{s_so}, s{s_t1}
    s_lshl_b32 s{s_t1}, s{s_rb}, 9
    s_add_u32 s{s_so}, s{s_so}, s{s_t1}
    s_mul_i32 s{s_t2}, s{s_t2}, {16*UST}
    s_add_u32 s{s_so}, s{s_so}, s{s_t2}
    s_add_u32 s{s_so}, s{s_so}, {T_OFF}
""")
    RA = (vB + 32, vB + 48)
    for x in scale(2) + scale(3): P.i(x)
    RB = (vB, vB + 16)
    if opt.get('stamps') == 1:
        P.i("s_memtime s[78:79]")
    MA = lambda L: [dict(text=t, cap=25) for t in L]
    for x in stage1(0, *RA): P.i(x)
    an = MA(stage1(1, *RB))
    an[2].update(pre=lambda P: P.i("s_nop 9"))
    sched.place(P, an, [pub(0, *RA, 2, 7)])
    an = MA(stage1(2, *RA))
    an[0].update(pre=lambda P: P.wait(lg=['p0']))
    an[2].update(pre=lambda P: P.i("s_nop 9"))
    sched.place(P, an, [pub(1, *RB, 2, 7)])
    P.wait(lg='all')
    P.i("s_barrier")
    RO = acc
    an = MA(stage1(3, *RB))
    sched.place(P, an, [pub(2, *RA, 3, 7), out_ops(0, RO, 0, 2)[:8]])
    rest = out_ops(0, RO, 0, 0)[8:]
    k = len(rest) // 2
    for f in rest[:k]: P.add(f)
    for f in pub(3, *RB, 0, 0): P.add(f)
    for f in rest[k:]: P.add(f)
    if opt.get('stamps') == 1:
        P.i("s_memtime s[80:81]")
    vCp = acc + 64
    P.i(f"v_lshlrev_b32 v{vEx}, 2, v{v_lane}\nv_add_u32 v{vEx}, {SC}, v{vEx}")
    P.wait(lg='all')
    for k in range(4):
        P.i(f"s_lshl_b32 s{s_t0}, s{s_st+k}, 4\nv_add_u32 v{vB+32+2*k}, s{s_t0}, v{vWr}\nv_add_u32 v{vB+33+2*k}, s{s_t0}, v{vWr+1}")
    P.i("s_barrier")
    for w2 in range(4):
        P.ds('cp', f"ds_read_b32 v{vCp+w2}, v{vEx} offset:{4096*w2+1024}")
    accL = acc + 80
    vWf = vB
    NB = 4

    vWs = vB + 32

    def rd_w(kk):
        return [f"ds_read_b64_tr_b16 {vr(vWf+4*(kk%NB)+2*p,2)}, v{vWs+2*((kk>>2)&3)+p} offset:{8192*(kk>>4)+512*(kk&3)}" for p in range(2)]
    for kk in range(NB - 1):
        for x in rd_w(kk): P.ds(f'l{kk}', x)
    an = []
    st_rd = []
    for kk in range(32):
        c = '0' if kk == 0 else vr(accL, 16)
        an.append(dict(text=f"v_mfma_f32_32x32x16_bf16 {vr(accL,16)}, {vr(vWf+4*(kk%NB),4)}, {ar(4*kk,4)}, {c}", cap=25,
                       pre=lambda P, kk=kk: P.wait(lg=[f'l{kk}']), precost=5))
        if kk + NB - 1 < 32:
            for x in rd_w(kk + NB - 1):
                st_rd.append(('ds', f'l{kk+NB-1}', x, kk, kk))
    cs = [f"v_add_f32 v{vCp}, v{vCp}, v{vCp+1}", f"v_add_f32 v{vCp+2}, v{vCp+2}, v{vCp+3}", f"v_add_f32 v{vCp}, v{vCp}, v{vCp+2}"]
    cs += split_hilo(vSel, vCp, vCp + 1)
    sched.place(P, an, [st_rd, out_ops(2, acc + 32, 0, 30), [('i', None, t, 20, 29) for t in cs]])
    if opt.get('stamps') == 1:
        P.i("s_memtime s[82:83]")
    P.i(f"""
    v_mfma_f32_32x32x16_bf16 {vr(accL,16)}, {vr(vSel,4)}, {vr(vmu,4)}, {vr(accL,16)}
    s_mul_i32 s{s_so}, s{s_a}, 86
    s_add_u32 s{s_so}, s{s_so}, s{s_par}
    s_add_u32 s{s_so}, s{s_so}, 84
    s_lshl_b32 s{s_so}, s{s_so}, 10
    s_nop 7
""")
    for x in gelu_unit(accL, vWf + 24, vWf + 16, vk1, vk3, vci):
        P.i(x)
    P.i(f"buffer_store_dwordx4 {vr(vWf+16,4)}, v{v_t3}, {sr(sWs,4)}, s{s_so} offen {st_aux}")
    P.emit(A, vm0=vm0)
    if opt.get('stamps'):
        A("s_waitcnt vmcnt(0)")
        if opt['stamps'] == 1:
            stamp(A, opt, 7)
        emit_stamp_store(A, 8 if opt['stamps'] == 1 else 11, sWs, 0x1000000, s_w, v_lane)
    v_pq = v_pq_save
    return lds
```

```python
class Prog:
    def __init__(self):
        self.e = []

    def i(self, text):
        for t in text.split('\n'):
            if t.strip():
                self.e.append(('i', None, t.strip()))

    def ds(self, tag, text):
        self.e.append(('ds', tag, text))

    def vm(self, tag, text):
        self.e.append(('vm', tag, text))

    def wait(self, lg=None, vm=None):
        self.e.append(('w', (lg, vm), None))

    def add(self, f):
        kind, tag, text = f[:3]
        if kind == 'w':
            self.wait(lg=tag)
        elif kind == 'i':
            self.i(text)
        else:
            lines = [t for t in text.split('\n') if t.strip()]
            for t in lines[:-1]:
                self.i(t)
            self.e.append((kind, tag, lines[-1].strip()))

    def emit(self, A, ds0=(), vm0=()):
        q = {'ds': list(ds0), 'vm': list(vm0)}
        done = {'ds': 0, 'vm': 0}
        prev = ''
        for kind, tag, text in self.e:
            if kind == 'i' and text == 's_nop 0 ;m0' and ' m0,' not in prev:
                continue
            prev = text or ''
            if kind == 'i':
                A(text)
            elif kind in ('ds', 'vm'):
                q[kind].append(tag)
                A(text)
            else:
                parts = []
                for k, tags, name, mx in (('vm', tag[1], 'vmcnt', 63), ('ds', tag[0], 'lgkmcnt', 15)):
                    if tags is None:
                        continue
                    if tags == 'all':
                        last = len(q[k]) - 1
                    else:
                        idx = [n for n, t in enumerate(q[k]) if t in tags]
                        assert idx and all(t in q[k] for t in tags), f"wait for {tags} not issued"
                        last = max(idx)
                    if last < done[k]:
                        continue
                    n = len(q[k]) - 1 - last
                    n = min(n, mx)
                    done[k] = len(q[k]) - n
                    parts.append(f"{name}({n})")
                if parts:
                    A("s_waitcnt " + " ".join(parts))
        return q, done


COST = {'i': 5, 'ds': 5, 'vm': 6}


def _cost(f):
    if len(f) > 5:
        return f[5]
    if f[0] == 'w':
        return 5
    extra = 5 * (len([t for t in f[2].split('\n') if t.strip()]) - 1)
    return COST[f[0]] + extra


def _plan(anchors, streams, slack):
    pos = [0] * len(streams)
    n = len(anchors)
    plan = []
    total = 0
    for g, a in enumerate(anchors):
        res = anchors[g + 1].get('precost', 0) if g + 1 < n else 0
        room = a['cap'] + (slack if a['cap'] > 10 else slack // 2) - res
        used = res
        L = []
        while True:
            cand = [(st[pos[k]][4], k) for k, st in enumerate(streams) if pos[k] < len(st) and st[pos[k]][3] <= g]
            if not cand:
                break
            cand.sort(key=lambda c: (streams[c[1]][pos[c[1]]][0] != 'vm' or len(L) > 1, c[0]))
            placed = False
            for dl, k in cand:
                f = streams[k][pos[k]]
                if dl <= g or g == n - 1 or _cost(f) <= room:
                    L.append(f)
                    room -= _cost(f)
                    used += _cost(f)
                    pos[k] += 1
                    placed = True
                    break
            if not placed:
                break
        plan.append(L)
        total += max(a['cap'], used) + 8
    for k, st in enumerate(streams):
        assert pos[k] == len(st), f"stream {k} not placed: {st[pos[k]]}"
    return plan, total


def place(P, anchors, streams, slack=None):
    if slack is None:
        best = min(range(0, 30), key=lambda s: (_plan(anchors, streams, s)[1], s))
    else:
        best = slack
    plan, total = _plan(anchors, streams, best)
    for a, L in zip(anchors, plan):
        if a.get('pre'):
            a['pre'](P)
        P.i(a['text'])
        for f in L:
            P.add(f)
    return best, total
```

```python
import sys

NAME = 'recurrent_scan__spectral_fnet__geglu_ffn__prompt'
T_OFF = 0x600000
WS_USED = 0x800000
LOG2E = 1.4426950408889634
TSIGN = 1


def f2u(x):
    import struct
    return struct.unpack('<I', struct.pack('<f', x))[0]


class Asm:
    def __init__(self):
        self.L = []

    def __call__(self, s):
        for line in s.split('\n'):
            line = line.strip()
            if line:
                self.L.append(('' if line.endswith(':') else '    ') + line)

    def text(self):
        return '\n'.join(self.L) + '\n'


def vr(a, n=1):
    return f"v{a}" if n == 1 else f"v[{a}:{a+n-1}]"


def ar(a, n=1):
    return f"a{a}" if n == 1 else f"a[{a}:{a+n-1}]"


def sr(a, n=1):
    return f"s{a}" if n == 1 else f"s[{a}:{a+n-1}]"


def kdesc(name, vgpr, sgpr, accum):
    return f""".amdhsa_kernel {name}
  .amdhsa_next_free_vgpr {vgpr}
  .amdhsa_next_free_sgpr {sgpr}
  .amdhsa_accum_offset {accum}
  .amdhsa_group_segment_fixed_size 0
  .amdhsa_kernarg_size 96
  .amdhsa_user_sgpr_count 2
  .amdhsa_user_sgpr_kernarg_segment_ptr 1
  .amdhsa_system_sgpr_workgroup_id_x 1
  .amdhsa_float_denorm_mode_32 3
.end_amdhsa_kernel
"""


def stamp(A, opt, idx):
    if opt.get('stamps'):
        A(f"s_memtime s[{70+2*idx}:{71+2*idx}]")


def gen_k2(A, opt):
    D = opt.get('k2_dist', 3)
    R = D + 1
    NST = 11
    rot = opt.get('k2_rot', 0)
    ypos = opt.get('k2_ypos', 1)
    sH, sWd, sT, sX, sOut = 8, 12, 16, 24, 28
    s_w, s_j, s_i, s_u, s_cb = 32, 33, 34, 35, 36
    s_hoff, s_woff, s_m0, s_t0, s_t1, s_sign = 37, 38, 39, 40, 41, 42
    s_toff, s_st, s_xoff = 43, 44, 45
    s_p0, s_p1 = 46, 47
    s_zm = 48
    s_c = 50
    s_hb, s_wb, s_a = 51, 52, 53
    s_xl, s_mt, s_r = 54, 55, 56
    v_lane, v_t0, v_t1, v_t2, v_t3 = 1, 2, 3, 4, 5
    v_h = 6
    v_w = 8
    v_r = 12
    v_T = 14
    v_tok = 16
    v_x = 17
    v_ex = 18
    vG = 20
    v_xd = 24
    v_Tr = 26
    v_xr = 28
    accO = [32, 48]
    accY = [64, 80]
    vTf = 96
    vMf = 144
    vX = 160
    vWf = 168
    vHf = 184
    assert vHf + 16 * R <= 256
    EXO = R * 16384
    TL = EXO + 32768
    XL = TL + 16384
    lds = XL + 8192

    A(f"""
k2_kernel:
    s_cmp_ge_u32 s2, 256
    s_cbranch_scc1 K2_end
    s_load_dwordx2 {sr(sH,2)}, s[0:1], 88
    s_load_dwordx2 {sr(sWd,2)}, s[0:1], 64
    s_load_dwordx2 {sr(sT,2)}, s[0:1], 88
    s_load_dwordx2 {sr(sX,2)}, s[0:1], 0
    s_load_dwordx2 {sr(sOut,2)}, s[0:1], 72
""")
    if opt.get('stamps'):
        A("s_memrealtime s[66:67]")
    stamp(A, opt, 0)
    A(f"""
    v_lshrrev_b32 v{v_t0}, 6, v0
    v_and_b32 v{v_lane}, 63, v0
    s_mov_b32 s{sH+2}, {64*86*1024}
    s_mov_b32 s{sH+3}, 0x20000
    v_readfirstlane_b32 s{s_w}, v{v_t0}
    s_mov_b32 s{sWd+2}, {1376*1024}
    s_mov_b32 s{sWd+3}, 0x20000
""")
    if opt.get('k2_map', 0) == 0:
        A(f"""
    s_lshr_b32 s{s_t0}, s2, 3
    s_and_b32 s{s_u}, s{s_t0}, 7
    s_lshr_b32 s{s_cb}, s{s_t0}, 3
    s_and_b32 s{s_t0}, s2, 6
    s_lshl_b32 s{s_t0}, s{s_t0}, 2
    s_add_u32 s{s_u}, s{s_u}, s{s_t0}
    s_and_b32 s{s_t0}, s2, 1
    s_lshl_b32 s{s_t0}, s{s_t0}, 2
    s_add_u32 s{s_cb}, s{s_cb}, s{s_t0}
""")
    else:
        A(f"""
    s_bfe_u32 s{s_u}, s2, 0x20003
    s_lshr_b32 s{s_cb}, s2, 5
    s_and_b32 s{s_t0}, s2, 7
    s_lshl_b32 s{s_t0}, s{s_t0}, 2
    s_add_u32 s{s_u}, s{s_u}, s{s_t0}
""")
    A(f"""
    s_and_b32 s{s_j}, s{s_w}, 1
    s_lshr_b32 s{s_i}, s{s_w}, 1
    ; h
    v_lshlrev_b32 v{v_h}, 4, v{v_lane}
    s_lshl_b32 s{s_a}, s{s_j}, 5
    s_add_u32 s{s_a}, s{s_a}, s{s_u}          ; a = u + 32 j
    s_mul_i32 s{s_hb}, s{s_a}, {86*1024}
    s_mul_i32 s{s_t0}, s{s_i}, {44*1024}
    s_add_u32 s{s_hb}, s{s_hb}, s{s_t0}
    v_lshrrev_b32 v{v_t0}, 3, v{v_lane}
    v_and_b32 v{v_t1}, 7, v{v_lane}
    v_lshrrev_b32 v{v_t2}, 2, v{v_lane}
    v_and_b32 v{v_t2}, 4, v{v_t2}
    v_xor_b32 v{v_t1}, v{v_t1}, v{v_t2}
    v_lshlrev_b32 v{v_t1}, 4, v{v_t1}
    v_lshl_add_u32 v{v_w}, v{v_t0}, 10, v{v_t1}
    v_add_u32 v{v_w+1}, {8192-1024}, v{v_w}
    v_add_u32 v{v_w+2}, {2*(8192-1024)}, v{v_w}
    v_add_u32 v{v_w+3}, {3*(8192-1024)}, v{v_w}
    s_mul_i32 s{s_wb}, s{s_i}, {704*1024}
    s_lshl_b32 s{s_t0}, s{s_j}, 15
    s_add_u32 s{s_wb}, s{s_wb}, s{s_t0}
    s_lshl_b32 s{s_t0}, s{s_cb}, 7
    s_add_u32 s{s_wb}, s{s_wb}, s{s_t0}
    s_lshl_b32 s{s_m0}, s{s_i}, 13
    s_lshl_b32 s{s_t0}, s{s_j}, 12
    s_add_u32 s{s_m0}, s{s_m0}, s{s_t0}
""")
    if rot == 1:
        A(f"s_and_b32 s{s_st}, s{s_cb}, 3\ns_mul_i32 s{s_st}, s{s_st}, 3")
    elif rot == 2:
        A(f"s_and_b32 s{s_st}, s{s_cb}, 1\ns_mul_i32 s{s_st}, s{s_st}, 5")
    elif rot == 3:
        A(f"s_and_b32 s{s_st}, s{s_u}, 3\ns_add_u32 s{s_st}, s{s_st}, s{s_cb}")
    elif rot == 4:
        A(f"s_mov_b32 s{s_st}, s{s_cb}")
    elif rot in (11, 13):
        A(f"s_add_u32 s{s_r}, s{s_cb}, s{s_u}\ns_and_b32 s{s_r}, s{s_r}, {rot-10}")
    else:
        A(f"s_mov_b32 s{s_st}, 0")

    def stage_parts(s):
        slot = (s % R) * 16384
        hb = vHf + 16 * (s % R)
        P = []
        for q in range(4):
            off = f" offset:{1024*q}" if q else ""
            t = ""
            if q == 0 and rot in (11, 13):
                if s < 8:
                    t = f"s_xor_b32 s{s_st}, s{s_r}, {s}\n"
                elif s < 10:
                    t = f"s_and_b32 s{s_st}, s{s_r}, 1\ns_xor_b32 s{s_st}, s{s_st}, {s}\n"
                else:
                    t = f"s_mov_b32 s{s_st}, {s}\n"
            if q == 0:
                t += (f"s_lshl_b32 s{s_hoff}, s{s_st}, 12\ns_add_u32 s{s_hoff}, s{s_hoff}, s{s_hb}\n"
                     f"s_lshl_b32 s{s_woff}, s{s_st}, 16\ns_add_u32 s{s_woff}, s{s_woff}, s{s_wb}\n"
                     f"s_add_u32 m0, s{s_m0}, {slot}\n")
            t += f"buffer_load_dwordx4 {vr(hb+4*q,4)}, v{v_h}, {sr(sH,4)}, s{s_hoff} offen{off}\n"
            t += f"buffer_load_dwordx4 v{v_w+q}, {sr(sWd,4)}, s{s_woff} offen{off} lds\n"
            if q == 3 and s < NST - 1 and rot not in (11, 13):
                t += f"s_add_u32 s{s_st}, s{s_st}, 1\n"
                if rot:
                    t += f"s_cmp_eq_u32 s{s_st}, {NST}\ns_cselect_b32 s{s_st}, 0, s{s_st}\n"
            P.append(t)
        return P

    def issue_stage(s):
        for t in stage_parts(s):
            A(t)
        return 8

    A("s_waitcnt lgkmcnt(0)")
    stamp(A, opt, 1)
    vm = []
    vm += ['s0'] * issue_stage(0)
    vm += ['s1'] * issue_stage(1)
    A(f"""
    s_mov_b32 s{sT+2}, {WS_USED}
    s_mov_b32 s{sT+3}, 0x20000
    s_mov_b32 s{sX+2}, {2048*1024}
    s_mov_b32 s{sX+3}, 0x20000
    s_mov_b32 s{sOut+2}, {2048*1024}
    s_mov_b32 s{sOut+3}, 0x20000
    ; T voffsets
    v_and_b32 v{v_t0}, 31, v{v_lane}            ; n
    v_lshrrev_b32 v{v_t1}, 5, v{v_lane}         ; h
    s_lshl_b32 s{s_t0}, s{s_cb}, 6
    v_add_u32 v{v_ex}, s{s_t0}, v{v_t0}
    s_cmp_ge_u32 s{s_cb}, 4
    s_cselect_b32 s{s_sign}, {'-1.0, 1.0' if TSIGN else '1.0, -1.0'}
    s_cselect_b32 s{s_p0}, -1, 0                ; mirror: e' = 512 - e = (e ^ -1) + 513
    s_cselect_b32 s{s_p1}, 513, 0
""")
    for ct in range(2):
        if ct == 1:
            A(f"v_xor_b32 v{v_ex}, 32, v{v_ex}")
        A(f"""
    v_xor_b32 v{v_t2}, s{s_p0}, v{v_ex}
    v_add_u32 v{v_t2}, s{s_p1}, v{v_t2}         ; e'
    v_and_b32 v{v_t3}, 1, v{v_t2}
    v_lshlrev_b32 v{v_T+ct}, 15, v{v_t3}        ; par*32768
    v_bfe_u32 v{v_t3}, v{v_t2}, 6, 2            ; tile = (e'>>6)&3
    v_lshl_add_u32 v{v_T+ct}, v{v_t3}, 13, v{v_T+ct}
    v_bfe_u32 v{v_t3}, v{v_t2}, 1, 5            ; n = (e'>>1)&31
    v_lshl_add_u32 v{v_T+ct}, v{v_t3}, 4, v{v_T+ct}
    v_lshl_add_u32 v{v_T+ct}, v{v_t1}, 9, v{v_T+ct}
""")
    A(f"""
    s_xor_b32 s{s_t0}, s{s_u}, s{s_p0}
    s_add_u32 s{s_t0}, s{s_t0}, s{s_p1}
    s_and_b32 s{s_t0}, s{s_t0}, 31              ; mirror: (513 + ~u) & 31 = (512-u)&31 = (32-u)&31
    s_lshl_b32 s{s_toff}, s{s_t0}, 16
    s_lshl_b32 s{s_t0}, s{s_w}, 11
    s_add_u32 s{s_toff}, s{s_toff}, s{s_t0}
    s_add_u32 s{s_toff}, s{s_toff}, {T_OFF}
    s_add_u32 s{s_mt}, s{s_t0}, {TL}
    s_mul_i32 s{s_t0}, s{s_i}, {8192+4096}
    s_add_u32 s{s_t0}, s{s_t0}, {TL}
    v_add_u32 v{v_Tr}, s{s_t0}, v{v_h}
    v_xor_b32 v{v_Tr+1}, 8192, v{v_Tr}
    v_lshrrev_b32 v{v_t2}, 3, v{v_lane}
    v_lshrrev_b32 v{v_t3}, 4, v{v_lane}
    v_and_b32 v{v_xd}, 7, v{v_lane}
    v_xor_b32 v{v_xd}, v{v_xd}, v{v_t3}
    v_lshlrev_b32 v{v_xd}, 4, v{v_xd}
    v_lshl_add_u32 v{v_xd}, v{v_t2}, 16, v{v_xd}
    v_xor_b32 v{v_xd+1}, 64, v{v_xd}
    v_add_u32 v{v_xd+1}, {8*65536-1024}, v{v_xd+1}
    s_lshl_b32 s{s_xl}, s{s_i}, 5
    s_add_u32 s{s_xl}, s{s_xl}, s{s_u}
    s_lshl_b32 s{s_xl}, s{s_xl}, 10
    s_lshl_b32 s{s_t0}, s{s_j}, 20
    s_add_u32 s{s_xl}, s{s_xl}, s{s_t0}
    s_lshl_b32 s{s_t0}, s{s_cb}, 7
    s_add_u32 s{s_xl}, s{s_xl}, s{s_t0}
    v_bfe_u32 v{v_t2}, v{v_lane}, 1, 3
    v_lshlrev_b32 v{v_t2}, 4, v{v_t2}
    v_lshl_add_u32 v{v_t2}, v{v_t0}, 7, v{v_t2}
    v_lshl_add_u32 v{v_t2}, v{v_t1}, 3, v{v_t2}
    s_lshl_b32 s{s_t0}, s{s_i}, 6
    v_xor_b32 v{v_t2}, s{s_t0}, v{v_t2}
    s_lshl_b32 s{s_t0}, s{s_j}, 12
    s_add_u32 s{s_t0}, s{s_t0}, {XL}
    v_add_u32 v{v_xr}, s{s_t0}, v{v_t2}
    v_lshlrev_b32 v{v_x}, 16, v{v_t0}
    v_lshl_add_u32 v{v_x}, v{v_t1}, 4, v{v_x}
    s_lshl_b32 s{s_xoff}, s{s_a}, 10
    s_lshl_b32 s{s_t0}, s{s_i}, 6
    s_add_u32 s{s_xoff}, s{s_xoff}, s{s_t0}
    s_lshl_b32 s{s_t0}, s{s_cb}, 7
    s_add_u32 s{s_xoff}, s{s_xoff}, s{s_t0}
    v_lshl_add_u32 v{v_tok}, v{v_t0}, 6, s{s_a}   ; token t = a + 64 b
""")
    A(f"""
    v_bfe_u32 v{v_t0}, v{v_lane}, 2, 2          ; r
    v_lshlrev_b32 v{v_r}, 7, v{v_t0}            ; r*128
    v_lshl_add_u32 v{v_r}, v{v_t1}, 9, v{v_r}   ; + 4h*128
    v_and_b32 v{v_t2}, 3, v{v_lane}
    v_lshl_add_u32 v{v_r}, v{v_t2}, 3, v{v_r}   ; + 8c
    v_bfe_u32 v{v_t2}, v{v_lane}, 4, 1
    v_lshl_add_u32 v{v_r}, v{v_t2}, 5, v{v_r}   ; + 32 cg
    v_bfe_u32 v{v_t2}, v{v_lane}, 3, 1          ; (r>>1)&1
    v_lshl_add_u32 v{v_r}, v{v_t2}, 6, v{v_r}
    s_mul_i32 s{s_t0}, s{s_i}, {8192+64}
    v_xor_b32 v{v_r}, s{s_t0}, v{v_r}
    v_xor_b32 v{v_r+1}, 64, v{v_r}
    s_lshl_b32 s{s_t0}, s{s_w}, 12
    s_add_u32 s{s_t0}, s{s_t0}, {EXO}
    v_add_u32 v{v_ex}, s{s_t0}, v{v_h}
    s_or_b32 s{s_t0}, s{s_cb}, s{s_i}
    s_cmp_eq_u32 s{s_t0}, 0
    s_cselect_b32 s{s_zm}, -1, 0
    s_mov_b32 s{s_zm+1}, 0
""")
    A(f"""
    s_lshl_b32 s{s_t0}, s{s_i}, 5
    v_lshl_add_u32 v{v_t2}, v{v_t1}, 2, s{s_t0}  ; a'0 = 32 i + 4 h
    v_mul_u32_u24 v{v_t2}, v{v_t2}, v{v_tok}     ; t * a'0
    v_lshlrev_b32 v{v_t3}, 2, v{v_tok}           ; 4 t
    s_mov_b32 s{s_c}, {hex(f2u(1.0/2048))}
""")
    tw = []
    for qq in range(4):
        for k in range(4):
            g = vG + 2 * (k & 1)
            tw += [f"v_and_b32 v{g}, 2047, v{v_t2}",
                   f"v_add_u32 v{v_t2}, v{v_t2}, v{v_tok}",
                   f"v_cvt_f32_u32 v{g}, v{g}",
                   f"v_mul_f32 v{g}, s{s_c}, v{g}",
                   f"v_sin_f32 v{g+1}, v{g}",
                   f"v_cos_f32 v{g}, v{g}",
                   f"v_mul_f32 v{g+1}, s{s_sign}, v{g+1}",
                   f"v_cvt_pk_bf16_f32 v{vMf+4*qq+k}, v{g}, v{g+1}"]
        tw.append(f"v_add_u32 v{v_t2}, v{v_t2}, v{v_t3}")
    for x in tw[:66]:
        A(x)
    for s in range(2, D):
        vm += [f's{s}'] * issue_stage(s)

    def wait_tag(tag):
        last = max(k for k, t in enumerate(vm) if t == tag)
        return len(vm) - 1 - last

    def reads(s, ks, buf):
        slot = (s % R) * 16384
        for ct in range(2):
            for p in range(2):
                A(f"ds_read_b64_tr_b16 {vr(vWf+buf*8+ct*4+2*p,2)}, v{v_r+ct} offset:{slot+ks*2048+p*1024}")

    first = [True, True]
    ydo = ypos + D + 2
    for s in range(NST):
        A(f"s_waitcnt vmcnt({wait_tag(f's{s}')})")
        A("s_barrier")
        if s in (0, 2, 4, 6, 8, 10):
            stamp(A, opt, 2 + s // 2)
        reads(s, 0, 0)
        parts = [""] * 4
        if s + D < NST:
            parts = stage_parts(s + D)
        extra = [[] for _ in range(4)]
        if s in (0, 1):
            h = tw[66:][33 * s:33 * s + 33]
            for q in range(4):
                extra[q] = h[len(h) * q // 4:len(h) * (q + 1) // 4]
        if s == ypos:
            for ct in range(2):
                parts[3] += (f"s_add_u32 m0, s{s_mt}, {8192*ct}\ns_nop 0\n"
                             f"buffer_load_dwordx4 v{v_T+ct}, {sr(sT,4)}, s{s_toff} offen lds ;y\n"
                             f"buffer_load_dwordx4 v{v_T+ct}, {sr(sT,4)}, s{s_toff} offen offset:1024 lds ;y\n")
        if s == ypos + 1:
            parts[3] += (f"s_add_u32 m0, s{s_mt}, {XL-TL}\ns_nop 0\n"
                         f"buffer_load_dwordx4 v{v_xd}, {sr(sX,4)}, s{s_xl} offen lds ;y\n"
                         f"buffer_load_dwordx4 v{v_xd+1}, {sr(sX,4)}, s{s_xl} offen offset:1024 lds ;y\n")
        for t in parts:
            for line in t.split("\n"):
                if line.startswith("buffer"):
                    vm.append('y' if ';y' in line else f's{s+D}')
        if s == ydo:
            for qq in range(4):
                for ct in range(2):
                    A(f"ds_read_b128 {vr(vTf+(qq*2+ct)*4,4)}, v{v_Tr+ct} offset:{1024*qq}")
            A("s_waitcnt lgkmcnt(0)")
            for qq in range(4):
                for ct in range(2):
                    c = '0' if qq == 0 else vr(accY[ct], 16)
                    A(f"v_mfma_f32_32x32x16_bf16 {vr(accY[ct],16)}, {vr(vTf+(qq*2+ct)*4,4)}, {vr(vMf+qq*4,4)}, {c}")
        if s == ydo + 1:
            for q in range(4):
                A(f"ds_write_b128 v{v_ex}, {vr(accY[1]+4*q,4)} offset:{16384+1024*q}")
        if s == ydo + 2:
            A(f"v_xor_b32 v{v_t0}, 8192, v{v_ex}")
            for q in range(4):
                A(f"ds_read_b128 {vr(accY[1]+4*q,4)}, v{v_t0} offset:{16384+1024*q}")
            for q in range(4):
                A(f"v_xor_b32 v{vG}, {16*q}, v{v_xr}")
                A(f"ds_read_b64 {vr(vX+2*q,2)}, v{vG}")
            A("s_waitcnt lgkmcnt(0)")
            for q in range(0, 16, 2):
                A(f"v_pk_add_f32 {vr(accY[0]+q,2)}, {vr(accY[0]+q,2)}, {vr(accY[1]+q,2)}")
            A(f"v_cndmask_b32 v{accY[0]}, v{accY[0]}, 0, {sr(s_zm,2)}")
            for k in range(8):
                A(f"v_lshlrev_b32 v{accY[1]+2*k}, 16, v{vX+k}")
                A(f"v_and_b32 v{accY[1]+2*k+1}, 0xffff0000, v{vX+k}")
        for ks in range(4):
            if ks + 1 < 4:
                reads(s, ks + 1, (ks + 1) & 1)
            hb = vHf + 16 * (s % R) + 4 * ks
            A(parts[ks])
            for x in extra[ks]:
                A(x)
            A(f"s_waitcnt lgkmcnt({4 if ks + 1 < 4 else 0})")
            for ct in (1, 0):
                c = '0' if first[ct] else vr(accO[ct], 16)
                first[ct] = False
                A(f"v_mfma_f32_32x32x16_bf16 {vr(accO[ct],16)}, {vr(vWf+(ks&1)*8+ct*4,4)}, {vr(hb,4)}, {c}")
    assert ydo + 2 < NST
    stamp(A, opt, 8)
    A("s_nop 10")
    for q in range(4):
        A(f"ds_write_b128 v{v_ex}, {vr(accO[1]+4*q,4)} offset:{1024*q}")
    A("s_waitcnt lgkmcnt(0)")
    A("s_barrier")
    for q in range(4):
        A(f"ds_read_b128 {vr(accO[1]+4*q,4)}, v{v_t0} offset:{1024*q}")
    A(f"s_mov_b32 s{s_c}, {hex(f2u(-LOG2E))}")
    tmp = vTf
    for q in range(4):
        A(f"s_waitcnt lgkmcnt({3-q})")
        o = accO[0] + 4 * q
        A(f"v_pk_add_f32 {vr(o,2)}, {vr(o,2)}, {vr(accO[1]+4*q,2)}")
        A(f"v_pk_add_f32 {vr(o+2,2)}, {vr(o+2,2)}, {vr(accO[1]+4*q+2,2)}")
        for k in range(4):
            A(f"v_mul_f32 v{tmp+4*q+k}, s{s_c}, v{o+k}")
        for k in range(4):
            A(f"v_exp_f32 v{tmp+4*q+k}, v{tmp+4*q+k}")
        for k in range(0, 4, 2):
            A(f"v_pk_mul_f32 {vr(o+k,2)}, {vr(o+k,2)}, {vr(accY[0]+4*q+k,2)}")
        for k in range(4):
            A(f"v_add_f32 v{tmp+4*q+k}, 1.0, v{tmp+4*q+k}")
        for k in range(4):
            A(f"v_rcp_f32 v{tmp+4*q+k}, v{tmp+4*q+k}")
    A("s_nop 0")
    for q in range(4):
        o = accO[0] + 4 * q
        for k in range(0, 4, 2):
            A(f"v_pk_fma_f32 {vr(o+k,2)}, {vr(o+k,2)}, {vr(tmp+4*q+k,2)}, {vr(accY[1]+4*q+k,2)}")
        A(f"v_cvt_pk_bf16_f32 v{vX+2*q}, v{o}, v{o+1}")
        A(f"v_cvt_pk_bf16_f32 v{vX+2*q+1}, v{o+2}, v{o+3}")
        if q & 1:
            P = q >> 1
            A("s_nop 1")
            A(f"v_permlane32_swap_b32 v{vX+4*P}, v{vX+4*P+2}")
            A(f"v_permlane32_swap_b32 v{vX+4*P+1}, v{vX+4*P+3}")
            A(f"buffer_store_dwordx4 {vr(vX+4*P,4)}, v{v_x}, {sr(sOut,4)}, s{s_xoff} offen offset:{32*P} {opt.get('out_aux','')}")
    if opt.get('stamps'):
        stamp(A, opt, 9)
        A("s_waitcnt vmcnt(0)")
        stamp(A, opt, 10)
        emit_stamp_store(A, 11, sH, 0x1000000 + 0x40000, s_w, v_lane)
    A("K2_end:")
    A("s_endpgm")
    return lds


def emit_stamp_store(A, n, srd, base, s_w, v_lane):
    A("s_memrealtime s[68:69]")
    A("s_waitcnt lgkmcnt(0)")
    for k in range(n):
        A(f"s_sub_u32 s64, s{70+2*k}, s70")
        A(f"v_writelane_b32 v2, s64, {k}")
    A("v_writelane_b32 v2, s66, 14")
    A("v_writelane_b32 v2, s68, 15")
    A(f"s_lshl_b32 s64, s2, 2\ns_add_u32 s64, s64, s{s_w}\ns_lshl_b32 s64, s64, 6\ns_add_u32 s64, s64, {base}")
    A(f"s_mov_b32 s{srd+2}, 0x2000000")
    A(f"v_lshlrev_b32 v3, 2, v{v_lane}")
    A(f"v_cmp_gt_u32 vcc, 16, v{v_lane}")
    A("s_and_saveexec_b64 s[62:63], vcc")
    A(f"buffer_store_dword v2, v3, {sr(srd,4)}, s64 offen")
    A("s_waitcnt vmcnt(0)")


HEADER = open('cdna_kernels/' + NAME + '.s.ref').read().split('; Override launch')[0] if True else ''


def build(opt):
    A = Asm()
    parts = []
    launches = []
    body = Asm()
    descs = []
    if opt.get('k1', True):
        from gen_k1 import gen_k1
        body(".globl k1_kernel\n.p2align 8\n.type k1_kernel,@function")
        lds1, vg, acc = gen_k1(body, opt)
        launches.append(f"; @launch kernel=k1_kernel grid=(256,1,1) block=(256,1,1) lds={lds1}")
        descs.append(kdesc('k1_kernel', vg, 102, acc))
    if opt.get('k2', True):
        body(".globl k2_kernel\n.p2align 8\n.type k2_kernel,@function")
        lds2 = gen_k2(body, opt)
        lds2 = max(lds2, opt.get('k2_lds_min', 0))
        launches.append(f"; @launch kernel=k2_kernel grid=(256,1,1) block=(256,1,1) lds={lds2}")
        descs.append(kdesc('k2_kernel', 256, 102, 256))
    out = HEADER + '\n'.join(launches) + '\n'
    out += '.amdgcn_target "amdgcn-amd-amdhsa--gfx950"\n.text\n'
    out += body.text()
    out += '.section .rodata,"a"\n'
    for d in descs:
        out += '.p2align 6\n' + d
    return out


if __name__ == '__main__':
    opt = {}
    fn = sys.argv[1]
    for a in sys.argv[2:]:
        k, v = a.split('=')
        opt[k] = int(v)
    open(fn, 'w').write(build(opt))
```

```python
import sched
from gen import Asm, vr, ar, sr, f2u, stamp, emit_stamp_store, T_OFF, WS_USED, LOG2E

GC = 2.0 * 0.7978845608028654 * LOG2E

sX, sWg, sWu, sWs, sHr, sHi = 8, 12, 16, 20, 24, 28
sPf = 4
s_pf = 3
v_pf = 7
s_w, s_rb, s_g, s_a = 32, 33, 34, 35
s_t0, s_t1, s_t2 = 36, 37, 38
s_ones = 39
v_lane, v_t0, v_t1, v_t2, v_t3 = 1, 2, 3, 4, 5
vXd = 8


def interleave(A, mfmas, fillers, lead=0):
    n = len(mfmas)
    k = 0
    for _ in range(lead):
        if k < len(fillers):
            A(fillers[k]); k += 1
    rest = len(fillers) - k
    done = 0
    for j, m in enumerate(mfmas):
        A(m)
        want = (rest * (j + 1) + n - 1) // n
        while done < want:
            A(fillers[k]); k += 1; done += 1


def stats_finalize(vS, vQ, vmu, vk1, vk3, vci, vrs, t0, t1):
    return f"""
    v_mov_b32 v{t0}, v{vS}
    v_mov_b32 v{t1}, v{vQ}
    s_nop 1
    v_permlane32_swap_b32 v{vS}, v{t0}
    v_permlane32_swap_b32 v{vQ}, v{t1}
    v_add_f32 v{vS}, v{vS}, v{t0}
    v_add_f32 v{vQ}, v{vQ}, v{t1}
    v_mul_f32 v{vS}, {hex(f2u(-1.0/512))}, v{vS}
    v_mul_f32 v{vQ}, {hex(f2u(1.0/512))}, v{vQ}
    v_cvt_pk_bf16_f32 v{vmu}, v{vS}, v{vS}
    v_fma_f32 v{vQ}, -v{vS}, v{vS}, v{vQ}
    v_max_f32 v{vQ}, 0, v{vQ}
    v_cvt_pk_bf16_f32 v{vQ}, v{vQ}, v{vQ}
    v_and_b32 v{vQ}, 0xffff0000, v{vQ}
    v_add_f32 v{vQ}, {hex(f2u(1e-5))}, v{vQ}
    v_cvt_pk_bf16_f32 v{vQ}, v{vQ}, v{vQ}
    v_and_b32 v{vQ}, 0xffff0000, v{vQ}
    v_sqrt_f32 v{vQ}, v{vQ}
    s_nop 0
    v_cvt_pk_bf16_f32 v{vQ}, v{vQ}, v{vQ}
    v_and_b32 v{vQ}, 0xffff0000, v{vQ}
    v_rcp_f32 v{vrs}, v{vQ}
    v_mul_f32 v{vci}, v{vQ}, v{vQ}
    v_mul_f32 v{vk1}, {hex(f2u(-GC))}, v{vrs}
    v_mul_f32 v{t0}, v{vrs}, v{vrs}
    v_mul_f32 v{t0}, {hex(f2u(0.044715))}, v{t0}
    v_mul_f32 v{vk3}, v{vk1}, v{t0}
    v_mov_b32 v{vk1+1}, v{vk1}
    v_mov_b32 v{vk3+1}, v{vk3}
    v_mov_b32 v{vci+1}, v{vci}
""".strip().split('\n')


def make_sel(A, vsel, t):
    A(f"""
    v_and_b32 v{t}, 31, v{v_lane}
    v_mov_b32 v{vsel+1}, s{s_ones}
    v_cmp_eq_u32 vcc, 0, v{t}
    v_cmp_eq_u32 s[62:63], 20, v{t}
    s_nop 0
    s_or_b64 vcc, vcc, s[62:63]
    s_nop 1
    v_cndmask_b32 v{vsel}, 0, v{vsel+1}, vcc
    v_mov_b32 v{vsel+1}, v{vsel}
    v_mov_b32 v{vsel+2}, v{vsel}
    v_mov_b32 v{vsel+3}, v{vsel}
""")


def split_hilo(dst, src, t):
    return [f"v_cvt_pk_bf16_f32 v{t}, v{src}, v{src}",
            f"v_and_b32 v{t}, 0xffff0000, v{t}",
            f"v_sub_f32 v{t}, v{src}, v{t}",
            f"v_cvt_pk_bf16_f32 v{dst}, v{src}, v{t}"]


def spread(A, slots, fillers):
    n = len(slots)
    k = 0
    for j, m in enumerate(slots):
        A(m)
        want = (len(fillers) * (j + 1) + n - 1) // n
        while k < want:
            A(fillers[k]); k += 1


def gelu_unit(acc, tmp, out, vk1, vk3, vci):
    L = []
    for k in range(0, 8, 2):
        L.append(f"v_pk_mul_f32 {vr(tmp+k,2)}, {vr(acc+k,2)}, {vr(acc+k,2)}")
    for k in range(0, 8, 2):
        L.append(f"v_pk_fma_f32 {vr(tmp+k,2)}, {vr(tmp+k,2)}, {vr(vk3,2)}, {vr(vk1,2)}")
    for k in range(0, 8, 2):
        L.append(f"v_pk_mul_f32 {vr(tmp+k,2)}, {vr(tmp+k,2)}, {vr(acc+k,2)}")
    for k in range(8):
        L.append(f"v_exp_f32 v{tmp+k}, v{tmp+k}")
    for k in range(0, 8, 2):
        L.append(f"v_pk_mul_f32 {vr(acc+k,2)}, {vr(acc+k,2)}, {vr(acc+8+k,2)}")
    for k in range(0, 8, 2):
        L.append(f"v_pk_fma_f32 {vr(tmp+k,2)}, {vr(tmp+k,2)}, {vr(vci,2)}, {vr(vci,2)}")
    for k in range(8):
        L.append(f"v_rcp_f32 v{tmp+k}, v{tmp+k}")
    L.append("s_nop 0")
    for k in range(0, 8, 2):
        L.append(f"v_pk_mul_f32 {vr(acc+k,2)}, {vr(acc+k,2)}, {vr(tmp+k,2)}")
    for k in range(4):
        L.append(f"v_cvt_pk_bf16_f32 v{out+k}, v{acc+2*k}, v{acc+2*k+1}")
    return L


def pf_setup(A, opt):
    if not opt.get('k2_pf', 1):
        return
    A(f"""
    s_lshr_b32 s{s_t0}, s2, 3                   ; jj
    s_and_b32 s{s_t1}, s2, 1
    s_lshl_b32 s{s_t1}, s{s_t1}, 9
    s_mov_b32 s{sPf+3}, 0x20000
    v_and_b32 v{v_t3}, 3, v0
    v_lshlrev_b32 v{v_t3}, 7, v{v_t3}
    s_cmp_eq_u32 s{s_w}, 3
    s_cbranch_scc1 K1_pfx{pf_setup.n}
    s_mov_b32 s{sPf+2}, {1376*1024}
    s_mul_i32 s{s_pf}, s{s_t0}, {43*1024}
    s_add_u32 s{s_pf}, s{s_pf}, s{s_t1}
    v_lshrrev_b32 v{v_t2}, 2, v0
    v_lshl_add_u32 v{v_pf}, v{v_t2}, 10, v{v_t3}
    v_cmp_gt_u32 vcc, 43, v{v_t2}
    v_mov_b32 v{v_t2}, 0x40000000
    s_nop 0
    v_cndmask_b32 v{v_pf}, v{v_t2}, v{v_pf}, vcc
    s_branch K1_pfy{pf_setup.n}
K1_pfx{pf_setup.n}:
    s_mov_b32 s{sPf}, s{sX}
    s_mov_b32 s{sPf+1}, s{sX+1}
    s_mov_b32 s{sPf+2}, {2048*1024}
    s_lshl_b32 s{s_pf}, s{s_t0}, 16
    s_add_u32 s{s_pf}, s{s_pf}, s{s_t1}
    s_and_b32 s{s_t1}, s2, 6
    s_lshl_b32 s{s_t1}, s{s_t1}, 12
    s_add_u32 s{s_pf}, s{s_pf}, s{s_t1}
    v_bfe_u32 v{v_t2}, v{v_lane}, 2, 3
    v_lshl_add_u32 v{v_pf}, v{v_t2}, 10, v{v_t3}
    v_lshrrev_b32 v{v_t2}, 5, v{v_lane}
    v_lshl_add_u32 v{v_pf}, v{v_t2}, 15, v{v_pf}
K1_pfy{pf_setup.n}:
""")
    pf_setup.n += 1


pf_setup.n = 0


sPq = 92
s_pq, s_pqd = 96, 97
v_pq = 15


def k1_pf_setup(A, opt):
    if not opt.get('k1_pf', 1):
        return
    G = opt.get('k1_pfg', 2)
    A(f"""
    s_lshr_b32 s{s_t0}, s2, 3                   ; jj
    v_lshrrev_b32 v{v_t2}, 4, v{v_lane}
    s_mov_b32 s{sPq+3}, 0x20000
    s_cmp_ge_u32 s{s_w}, 2
    s_cbranch_scc1 K1_pqw{pf_setup.n}
    s_mov_b32 s{sPq}, s{sX}
    s_mov_b32 s{sPq+1}, s{sX+1}
    s_mov_b32 s{sPq+2}, {2048*1024}
    s_lshl_b32 s{s_pq}, s{s_t0}, 16
    s_and_b32 s{s_t1}, s2, 1
    s_lshl_b32 s{s_t1}, s{s_t1}, 1
    s_add_u32 s{s_t1}, s{s_t1}, s{s_w}
    s_lshl_b32 s{s_t1}, s{s_t1}, 14
    s_add_u32 s{s_pq}, s{s_pq}, s{s_t1}
    s_add_u32 s{s_pq}, s{s_pq}, {128*opt.get('k1_pf0', 2)}
    s_mov_b32 s{s_pqd}, {128*G}
    v_and_b32 v{v_t3}, 15, v{v_lane}
    v_lshlrev_b32 v{v_t3}, 10, v{v_t3}
    v_lshl_add_u32 v{v_pq}, v{v_t2}, 7, v{v_t3}
    s_branch K1_pqe{pf_setup.n}
K1_pqw{pf_setup.n}:
    s_cmp_eq_u32 s{s_w}, 2
    s_cselect_b32 s{sPq}, s{sWg}, s{sWu}
    s_cselect_b32 s{sPq+1}, s{sWg+1}, s{sWu+1}
    s_mov_b32 s{sPq+2}, {512*2752}
    s_mul_i32 s{s_pq}, s{s_t0}, {2*2752}
    s_bfe_u32 s{s_t1}, s2, 0x20001
    s_mul_i32 s{s_t1}, s{s_t1}, 768
    s_add_u32 s{s_pq}, s{s_pq}, s{s_t1}
    s_add_u32 s{s_pq}, s{s_pq}, {64*2752*opt.get('k1_pf0', 2)}
    s_mov_b32 s{s_pqd}, {64*2752*G}
    v_and_b32 v{v_t3}, 7, v{v_lane}
    v_lshlrev_b32 v{v_t3}, 7, v{v_t3}
    v_min_u32 v{v_t3}, 764, v{v_t3}
    v_lshlrev_b32 v{v_pq}, 6, v{v_t2}
    v_bfe_u32 v{v_t1}, v{v_lane}, 3, 1
    v_add_u32 v{v_pq}, v{v_pq}, v{v_t1}
    v_mul_u32_u24 v{v_pq}, 2752, v{v_pq}
    v_add_u32 v{v_pq}, v{v_pq}, v{v_t3}
K1_pqe{pf_setup.n}:
    v_cmp_gt_u32 vcc, {G}, v{v_t2}
    s_nop 1
    v_cndmask_b32 v{v_pq}, -1, v{v_pq}, vcc
""")


def k1_pf_load(dst):
    return f"buffer_load_dword {dst}, v{v_pq}, {sr(sPq,4)}, s{s_pq} offen\ns_add_u32 s{s_pq}, s{s_pq}, s{s_pqd}"


def pf_load():
    return f"buffer_load_dword v{v_pf}, v{v_pf}, {sr(sPf,4)}, s{s_pf} offen"


def gen_k1(A, opt):
    pf_setup.n = 0
    st_aux = opt.get('h_store_aux', '')
    A(f"""
k1_kernel:
    s_cmp_ge_u32 s2, 256
    s_cbranch_scc1 K1_end
    s_load_dwordx2 {sr(sX,2)}, s[0:1], 0
    s_load_dwordx2 {sr(sWg,2)}, s[0:1], 48
    s_load_dwordx2 {sr(sWu,2)}, s[0:1], 56
    s_load_dwordx2 {sr(sWs,2)}, s[0:1], 88
    s_load_dwordx2 {sr(sHr,2)}, s[0:1], 24
    s_load_dwordx2 {sr(sHi,2)}, s[0:1], 32
    s_load_dwordx2 {sr(sPf,2)}, s[0:1], 64
""")
    if opt.get('stamps'):
        A("s_memrealtime s[66:67]")
    stamp(A, opt, 0)
    if opt.get('code_pf', 1):
        A(f"""
    s_getpc_b64 s[{s_t0}:{s_t0+1}]
    v_lshlrev_b32 v6, 7, v0
    s_bfe_u32 s{s_t2}, s2, 0x20003
    s_cmp_lg_u32 s{s_t2}, 0
    s_cbranch_scc1 K1_nopf
    global_load_dword v6, v6, s[{s_t0}:{s_t0+1}]
K1_nopf:
""")
    A(f"""
    v_lshrrev_b32 v{v_t0}, 6, v0
    v_and_b32 v{v_lane}, 63, v0
    s_mov_b32 s{sX+2}, {2048*1024}
    s_mov_b32 s{sX+3}, 0x20000
    v_readfirstlane_b32 s{s_w}, v{v_t0}
    s_mov_b32 s{sWg+2}, {512*2752}
    s_mov_b32 s{sWg+3}, 0x20000
    s_mov_b32 s{sWu+2}, {512*2752}
    s_mov_b32 s{sWu+3}, 0x20000
    s_lshr_b32 s{s_t0}, s2, 3
    s_and_b32 s{s_rb}, s{s_t0}, 7
    s_lshr_b32 s{s_g}, s{s_t0}, 3
    s_and_b32 s{s_t0}, s2, 1
    s_lshl_b32 s{s_t0}, s{s_t0}, 3
    s_add_u32 s{s_rb}, s{s_rb}, s{s_t0}
    s_and_b32 s{s_t0}, s2, 6
    s_lshl_b32 s{s_t0}, s{s_t0}, 1
    s_add_u32 s{s_g}, s{s_g}, s{s_t0}
    s_lshl_b32 s{s_a}, s{s_rb}, 2
    s_add_u32 s{s_a}, s{s_a}, s{s_w}
    v_lshrrev_b32 v{v_t0}, 3, v{v_lane}
    v_and_b32 v{v_t1}, 7, v{v_lane}
    v_lshrrev_b32 v{v_t2}, 4, v{v_lane}
    v_xor_b32 v{v_t1}, v{v_t1}, v{v_t2}
    v_lshlrev_b32 v{v_t1}, 4, v{v_t1}
    v_lshl_add_u32 v{vXd}, v{v_t0}, 16, v{v_t1}
    v_xor_b32 v{vXd+1}, 64, v{vXd}
    v_add_u32 v{vXd+2}, {2*(8*65536-1024)}, v{vXd}
    v_add_u32 v{vXd+3}, {3*(8*65536-1024)}, v{vXd+1}
    v_add_u32 v{vXd+1}, {8*65536-1024}, v{vXd+1}
    s_mov_b32 s{s_ones}, 0x3f803f80
""")
    D = Asm()
    lds_d = gen_dft(D, opt, st_aux)
    k = D.L.index('K1_dft_main:')
    if opt.get('dft_first', 1):
        A(f"s_cmp_lt_u32 s{s_g}, 14\ns_cbranch_scc1 K1_ffn")
        A.L += D.L[:k]
        A("s_branch K1_dft_main")
        A("K1_ffn:")
        lds_f = gen_ffn(A, opt, st_aux)
        A.L += D.L[k:]
    else:
        A(f"s_cmp_ge_u32 s{s_g}, 14\ns_cbranch_scc1 K1_dft")
        lds_f = gen_ffn(A, opt, st_aux)
        A.L += D.L
    A("K1_end:")
    A("s_endpgm")
    return max(lds_f, lds_d), 428, 256


def gen_ffn(A, opt, st_aux):
    SLOT = 41024
    WIMG = 16384
    UPO = 12320
    EXC = 3 * SLOT
    lds = EXC + 8192
    s_xo, s_wo = 40, 48
    s_mx, s_mg, s_mu, s_ho, s_h1 = 56, 57, 58, 59, 60
    s_ck = 61
    vWd = 12
    vXr = 16
    vWr = 20
    vS, vQ = 24, 26
    vTm = 28
    vSel = 32
    vXf = 36
    vWf = 68
    vC = 92
    acc = 104
    rot = opt.get('k1_rot', 0)

    A(f"s_mul_i32 s{s_t0}, s{s_w}, 192")
    A(f"s_mov_b32 s{s_t1}, 0x15555556")
    for i in range(3):
        A(f"""
    s_add_u32 s{s_t2}, s{s_t0}, {64*i}
    v_add_u32 v{v_t2}, s{s_t2}, v{v_lane}
    v_mul_hi_u32 v{v_t3}, v{v_t2}, s{s_t1}
    v_lshlrev_b32 v{v_t2}, 4, v{v_t2}
    v_mul_u32_u24 v{v_t3}, {2752-192}, v{v_t3}
    v_add_u32 v{vWd+i}, v{v_t2}, v{v_t3}
""")
        if i:
            A(f"v_subrev_u32 v{vWd+i}, {1024*i}, v{vWd+i}")
    if rot == 8:
        A(f"s_lshl_b32 s{s_ck}, s{s_g}, 1\ns_add_u32 s{s_ck}, s{s_ck}, s{s_rb}")
    elif rot == 4:
        A(f"s_add_u32 s{s_ck}, s{s_g}, s{s_rb}\ns_lshl_b32 s{s_ck}, s{s_ck}, 1")
    elif rot == 2:
        A(f"s_add_u32 s{s_ck}, s{s_g}, s{s_rb}\ns_lshl_b32 s{s_ck}, s{s_ck}, 2")
    elif rot == 11:
        A(f"s_add_u32 s{s_ck}, s{s_g}, s{s_rb}\ns_and_b32 s{s_ck}, s{s_ck}, 1")
    elif rot == 13:
        A(f"s_add_u32 s{s_ck}, s{s_g}, s{s_rb}\ns_and_b32 s{s_ck}, s{s_ck}, 3")
    elif rot in (7, 6):
        A(f"s_lshl_b32 s{s_ck}, s{s_g}, 1\ns_add_u32 s{s_ck}, s{s_ck}, s{s_rb}\ns_mul_i32 s{s_t0}, s{s_ck}, {(65536 + rot - 1) // rot}\n"
          f"s_lshr_b32 s{s_t0}, s{s_t0}, 16\ns_mul_i32 s{s_t0}, s{s_t0}, {rot}\ns_sub_u32 s{s_ck}, s{s_ck}, s{s_t0}")
    A(f"""
    s_lshl_b32 s{s_ho}, s{s_a}, 10
    s_mul_i32 s{s_h1}, s{s_g}, 192
    s_lshl_b32 s{s_mx}, s{s_w}, 12
    s_mul_i32 s{s_mg}, s{s_w}, 3072
    s_add_u32 s{s_mu}, s{s_mg}, {WIMG+UPO}
    s_add_u32 s{s_mg}, s{s_mg}, {WIMG}
""")

    def offs(c):
        if rot in (11, 13):
            return [f"s_xor_b32 s{s_t0}, s{s_ck}, {c}",
                    f"s_lshl_b32 s{s_xo+c}, s{s_t0}, 7", f"s_add_u32 s{s_xo+c}, s{s_xo+c}, s{s_ho}",
                    f"s_mul_i32 s{s_wo+c}, s{s_t0}, {64*2752}", f"s_add_u32 s{s_wo+c}, s{s_wo+c}, s{s_h1}"]
        if rot in (7, 6) and c >= 8 - rot:
            return [f"s_add_u32 s{s_t0}, s{s_ck}, {8-rot}",
                    f"s_lshl_b32 s{s_xo+c}, s{s_t0}, 7", f"s_add_u32 s{s_xo+c}, s{s_xo+c}, s{s_ho}",
                    f"s_mul_i32 s{s_wo+c}, s{s_t0}, {64*2752}", f"s_add_u32 s{s_wo+c}, s{s_wo+c}, s{s_h1}",
                    f"s_add_u32 s{s_ck}, s{s_ck}, 1", f"s_cmp_eq_u32 s{s_ck}, {rot}", f"s_cselect_b32 s{s_ck}, 0, s{s_ck}"]
        if rot in (2, 4, 8):
            return [f"s_add_u32 s{s_t0}, s{s_ck}, {c}", f"s_and_b32 s{s_t0}, s{s_t0}, 7",
                    f"s_lshl_b32 s{s_xo+c}, s{s_t0}, 7", f"s_add_u32 s{s_xo+c}, s{s_xo+c}, s{s_ho}",
                    f"s_mul_i32 s{s_wo+c}, s{s_t0}, {64*2752}", f"s_add_u32 s{s_wo+c}, s{s_wo+c}, s{s_h1}"]
        return [f"s_add_u32 s{s_xo+c}, s{s_ho}, {128*c}", f"s_add_u32 s{s_wo+c}, s{s_h1}, {64*2752*c}"]

    def dma_list(c, nop=False):
        slot = (c % 3) * SLOT
        L = []
        for srd, m, v, n, so in ((sX, s_mx, vXd, 4, s_xo + c), (sWg, s_mg, vWd, 3, s_wo + c), (sWu, s_mu, vWd, 3, s_wo + c)):
            L.append(f"s_add_u32 m0, s{m}, {slot}" + ("\ns_nop 0" if nop else ""))
            for i in range(n):
                off = f" offset:{1024*i}" if i else ""
                L.append(f"buffer_load_dwordx4 v{v+i}, {sr(srd,4)}, s{so} offen{off} lds")
        return L

    for x in offs(0):
        A(x)
    A("s_waitcnt lgkmcnt(0)")
    stamp(A, opt, 1)
    vm0 = ['c0'] * 10
    for x in dma_list(0, True):
        A(x)
    G = opt.get('k1_pfg', 2)
    pf0 = opt.get('k1_pf0', 2)
    npq = (8 - pf0 + G - 1) // G if opt.get('k1_pf', 1) else 0
    for x in offs(1) + dma_list(1, True):
        A(x)
    vm0 += ['c1'] * 10
    if npq:
        k1_pf_setup(A, opt)
        if pf0 == 2:
            A(k1_pf_load('v6'))
            vm0.append('p')
    if opt.get('k1_up3'):
        for x in offs(2) + dma_list(2, True):
            A(x)
        vm0 += ['c2'] * 10
    for c in range(3 if opt.get('k1_up3') else 2, 8):
        for x in offs(c):
            A(x)
    A(f"""
    s_mov_b32 s{sWs+2}, {WS_USED}
    s_mov_b32 s{sWs+3}, 0x20000
    v_and_b32 v{v_t0}, 31, v{v_lane}            ; r
    v_lshrrev_b32 v{v_t1}, 5, v{v_lane}         ; h
    v_bfe_u32 v{v_t2}, v{v_lane}, 1, 3          ; (r>>1)&7
    v_xor_b32 v{v_t2}, v{v_t2}, v{v_t1}
    v_lshlrev_b32 v{v_t2}, 4, v{v_t2}
    v_lshl_add_u32 v{v_t2}, v{v_t0}, 7, v{v_t2}
    s_lshr_b32 s{s_t0}, s{s_w}, 1
    s_lshl_b32 s{s_t0}, s{s_t0}, 13
    s_lshl_b32 s{s_t1}, s{s_w}, 5
    s_add_u32 s{s_t0}, s{s_t0}, s{s_t1}
    v_xor_b32 v{vXr}, s{s_t0}, v{v_t2}
    v_xor_b32 v{vXr+1}, 32, v{vXr}
    v_xor_b32 v{vXr+2}, 64, v{vXr}
    v_xor_b32 v{vXr+3}, 96, v{vXr}
    v_bfe_u32 v{v_t0}, v{v_lane}, 2, 2
    v_lshl_add_u32 v{v_t0}, v{v_t1}, 3, v{v_t0}
    v_mul_u32_u24 v{v_t0}, 192, v{v_t0}
    v_and_b32 v{v_t2}, 3, v{v_lane}
    v_lshl_add_u32 v{v_t0}, v{v_t2}, 3, v{v_t0}
    v_bfe_u32 v{v_t2}, v{v_lane}, 4, 1
    v_mul_u32_u24 v{v_t2}, {UPO}, v{v_t2}
    v_add_u32 v{v_t0}, v{v_t0}, v{v_t2}
    s_and_b32 s{s_t1}, s{s_w}, 1
    s_mul_i32 s{s_t1}, s{s_t1}, 96
    s_add_u32 s{s_t1}, s{s_t1}, {WIMG}
""")
    for s in range(4):
        A(f"s_xor_b32 s{s_t0}, s{s_w}, {s}\ns_mul_i32 s{s_t0}, s{s_t0}, 3072\ns_add_u32 s{s_t0}, s{s_t0}, s{s_t1}")
        A(f"v_add_u32 v{vWr+s}, s{s_t0}, v{v_t0}")
    vB2 = 248
    for k in range(8):
        A(f"v_add_u32 v{vB2+k}, {2*SLOT}, v{vXr+k}")
    make_sel(A, vSel, v_t2)
    pf_setup(A, opt)
    for r in range(vS, vS + 4):
        A(f"v_mov_b32 v{r}, 0")
    A(f"""
    s_and_b32 s{s_t0}, s{s_a}, -2
    s_mul_i32 s{s_ho}, s{s_t0}, 86
    s_mul_i32 s{s_t0}, s{s_g}, 6
    s_add_u32 s{s_ho}, s{s_ho}, s{s_t0}
    s_and_b32 s{s_t0}, s{s_w}, 1
    s_mul_i32 s{s_t0}, s{s_t0}, 3
    s_add_u32 s{s_ho}, s{s_ho}, s{s_t0}
    s_lshl_b32 s{s_ho}, s{s_ho}, 10
    s_add_u32 s{s_h1}, s{s_ho}, {86*1024}
""")

    def slot_of(n):
        sl = (n >> 2) % 3
        return (vB2 - vXr, 0) if sl == 2 else (0, sl * SLOT)

    def rd_x(n, t):
        d, o = slot_of(n)
        return f"ds_read_b128 {vr(vXf+8*(n&3)+4*t,4)}, v{vXr+d+(n&3)} offset:{o+4096*t}"

    def rd_w(n, j, p):
        d, o = slot_of(n)
        return f"ds_read_b64_tr_b16 {vr(vWf+12*(n&1)+4*j+2*p,2)}, v{vWr+d+(n&3)} offset:{o+768*p+32*j}"

    def stat_ops(n, t):
        L = []
        for k in range(4):
            x = vXf + 8 * (n & 3) + 4 * t + k
            a = vTm + 2 * (k & 1)
            L += [f"v_lshlrev_b32 v{a}, 16, v{x}", f"v_and_b32 v{a+1}, 0xffff0000, v{x}",
                  f"v_fmac_f32 v{vQ+t}, v{a}, v{a}", f"v_fmac_f32 v{vQ+t}, v{a+1}, v{a+1}"]
        return L

    def mfma(n, j, t):
        d = acc + 16 * (2 * j + t)
        c = '0' if n == 0 else vr(d, 16)
        return f"v_mfma_f32_32x32x16_bf16 {vr(d,16)}, {vr(vWf+12*(n&1)+4*j,4)}, {vr(vXf+8*(n&3)+4*t,4)}, {c}"

    def cs_mfma(n, j):
        c = '0' if n == 0 else vr(vC + 4 * j, 4)
        return f"v_mfma_f32_16x16x32_bf16 {vr(vC+4*j,4)}, {vr(vSel,4)}, {vr(vWf+12*(n&1)+4*j,4)}, {c}"

    vR = 240

    def rs_mfma(n):
        t = n & 1
        c = '0' if n < 2 else vr(vR + 4 * t, 4)
        return f"v_mfma_f32_16x16x32_bf16 {vr(vR+4*t,4)}, {vr(vSel,4)}, {vr(vXf+8*((n-t)&3)+4*t,4)}, {c}"

    P = sched.Prog()
    P.wait(vm=['c0'])
    P.i("s_barrier")
    if opt.get('stamps'):
        P.i("s_memtime s[74:75]")

    def rtags(n):
        return [(f'x{n}_0', rd_x(n, 0)), (f'w{n}_0', rd_w(n, 0, 0)), (f'w{n}_0', rd_w(n, 0, 1)), (f'x{n}_1', rd_x(n, 1)),
                (f'w{n}_1', rd_w(n, 1, 0)), (f'w{n}_1', rd_w(n, 1, 1)), (f'w{n}_2', rd_w(n, 2, 0)), (f'w{n}_2', rd_w(n, 2, 1))]
    for tag, t in rtags(0):
        P.ds(tag, t)
    anchors = []
    first = {}
    barpos = opt.get('k1_barpos', 1)
    bar_at = {}
    for n in range(32):
        c, s = n >> 2, n & 3
        first[n] = len(anchors)
        for g in range(6):
            j, t = g >> 1, g & 1
            a = dict(text=mfma(n, j, t), cap=25)
            if s == 3 and c < 7 and g == barpos:
                def pre(P, c=c):
                    P.wait(lg='all', vm=[f'c{c+1}'] if not (opt.get('x_nodma') and c >= 1) else None)
                    if not opt.get('x_nobar'):
                        P.i("s_barrier")
                    if opt.get('stamps') == 2:
                        P.i(f"s_memtime s[{76+2*c}:{77+2*c}]")
                    elif c == 6 and opt.get('stamps'):
                        P.i("s_memtime s[76:77]")
                a.update(pre=pre, precost=10)
                bar_at[c] = len(anchors)
            elif g == 0:
                a.update(pre=lambda P, n=n: P.wait(lg=[f'x{n}_0', f'w{n}_0', f'x{n}_1', f'w{n}_1']), precost=5)
            elif g == 4 and not (s == 3 and c < 7 and barpos < 4):
                a.update(pre=lambda P, n=n: P.wait(lg=[f'w{n}_2']), precost=5)
            anchors.append(a)
            if s < 2 and t == 1:
                anchors.append(dict(text=cs_mfma(n, j), cap=8))
            if g == (2 if s < 2 else 3):
                anchors.append(dict(text=rs_mfma(n), cap=8))
    first[32] = len(anchors)
    last = lambda n: first[n + 1] - 1
    st_rd, st_va, st_dm = [], [], []
    for n in range(31):
        e = bar_at[n >> 2] if (n & 3) == 3 else first[n]
        dls = [1, 2, 2, 3, 4, 4, 99, 99]
        for (tag, t), dl in zip(rtags(n + 1), dls):
            st_rd.append(('ds', tag, t, e, min(max(first[n] + dl, e + (dl + 1) // 2), last(n))))
    for n in range(0, 32, 2):
        ops = stat_ops(n, 0) + stat_ops(n, 1)
        if opt.get('x_nostats'):
            ops = []
        lo, hi = first[n], last(min(n + 2, 31))
        for k, t in enumerate(ops):
            st_va.append(('i', None, t, lo, hi))
    lead = opt.get('k1_lead', 0)
    span = opt.get('k1_span', 26)
    for q in range(3 if opt.get('k1_up3') else 2, 8):
        L = dma_list(q)
        e0 = (bar_at[q - 3] if q >= 3 else 0) + lead
        items = []
        for t in L:
            if t.startswith('s_add'):
                items.append(('i', None, t))
            else:
                items.append(('vm', f'c{q}', t))
        for m in range(1 if pf0 == 2 else 0, npq):
            if max(3 if opt.get('k1_up3') else 2, pf0 + G * m + opt.get('k1_pfo', -1)) == q:
                ld, inc = k1_pf_load('v6').split('\n')
                st_dm.append(('vm', 'p', ld, e0, e0 + 1))
                st_dm.append(('i', None, inc + ' ', e0, e0 + 2))
        k = 0
        for kind, tag, t in items:
            e = e0 + span * k // 10
            if kind == 'i':
                st_dm.append((kind, tag, t, max(e - 1, e0), e + 1))
            else:
                prev_m0 = st_dm and ' m0,' in st_dm[-1][2]
                st_dm.append((kind, tag, ("s_nop 0 ;m0\n" if prev_m0 else "") + t, e, e + 3, opt.get('k1_vmcost', 6)))
                k += 1
        if q == opt.get('k2_pf_q', 7) and opt.get('k2_pf', 1):
            st_dm.append(('vm', 'pf', pf_load(), e0 + span, e0 + span + 3))
    if opt.get('x_nodma'):
        st_dm = []
    if opt.get('x_oob'):
        A(f's_mov_b32 s{sX+2}, 0\ns_mov_b32 s{sWg+2}, 0\ns_mov_b32 s{sWu+2}, 0')
    over = sched.place(P, anchors, [st_rd, st_dm, st_va], slack=opt.get('k1_slack'))
    if opt.get('verbose'): print('ffn loop slack/est', over)
    P.emit(A, vm0=vm0)
    if opt.get('stamps') == 1: stamp(A, opt, 4)
    vE = vXf
    A(f"""
    v_lshlrev_b32 v{v_t0}, 4, v{v_lane}
    s_lshl_b32 s{s_t0}, s{s_w}, 11
    s_add_u32 s{s_t0}, s{s_t0}, {EXC}
    v_add_u32 v{v_t1}, s{s_t0}, v{v_t0}
    v_mov_b32 v{vC+1}, v{vC+4}
    v_mov_b32 v{vC+2}, v{vC+8}
    v_mov_b32 v{vS}, v{vR}
    v_mov_b32 v{vS+1}, v{vR+4}
    ds_write_b128 v{v_t1}, {vr(vS,4)}
    ds_write_b128 v{v_t1}, {vr(vC,4)} offset:1024
    v_xor_b32 v{v_t2}, {2048}, v{v_t1}
    v_xor_b32 v{v_t3}, {4096}, v{v_t1}
""")
    vmu = [vE + 8, vE + 12]
    for t in range(2):
        for k in range(1, 4):
            A(f"v_mov_b32 v{vmu[t]+k}, 0")
    A(f"""
    s_waitcnt lgkmcnt(0)
    s_barrier
    ds_read_b128 {vr(vE,4)}, v{v_t2}
    ds_read_b128 {vr(vE+4,4)}, v{v_t3} offset:1024
    s_waitcnt lgkmcnt(1)
    v_pk_add_f32 {vr(vS,2)}, {vr(vS,2)}, {vr(vE,2)}
    v_pk_add_f32 {vr(vQ,2)}, {vr(vQ,2)}, {vr(vE+2,2)}
""")
    vk1, vk3, vci, vrs = [200, 208], [202, 210], [204, 212], [206, 214]
    f0 = stats_finalize(vS, vQ, vmu[0], vk1[0], vk3[0], vci[0], vrs[0], vTm, vTm + 1)
    f1 = stats_finalize(vS + 1, vQ + 1, vmu[1], vk1[1], vk3[1], vci[1], vrs[1], vTm + 2, vTm + 3)
    for a, b in zip(f0, f1):
        if a.strip().startswith('s_nop'):
            if 's_nop 1' in a:
                A("s_nop 0")
            continue
        A(a); A(b)
    A("s_waitcnt lgkmcnt(0)")
    for j in range(3):
        A(f"v_add_f32 v{vC+j}, v{vC+j}, v{vE+4+j}")
    for j in range(3):
        for x in split_hilo(vWf + 4 * j, vC + j, vTm):
            A(x)
    A("s_nop 1")
    for j in range(3):
        for t in range(2):
            d = acc + 16 * (2 * j + t)
            A(f"v_mfma_f32_32x32x16_bf16 {vr(d,16)}, {vr(vWf+4*j,4)}, {vr(vmu[t],4)}, {vr(d,16)}")
    A("s_nop 7")
    if opt.get('stamps') == 1: stamp(A, opt, 5)
    k = 0
    for j in range(3):
        for t in range(2):
            tmp = vXf + 16 + 8 * (k & 1)
            out = 216 + 4 * k
            for x in gelu_unit(acc + 16 * (2 * j + t), tmp, out, vk1[t], vk3[t], vci[t]):
                A(x)
            A(f"buffer_store_dwordx4 {vr(out,4)}, v{v_t0}, {sr(sWs,4)}, s{s_h1 if t else s_ho} offen offset:{1024*j} {st_aux}")
            k += 1
    if opt.get('stamps'):
        if opt.get('stamps') == 2:
            stamp(A, opt, 10)
            emit_stamp_store(A, 11, sWs, 0x1000000, s_w, v_lane)
        else:
            stamp(A, opt, 6)
            A("s_waitcnt vmcnt(0)")
            stamp(A, opt, 7)
            emit_stamp_store(A, 8, sWs, 0x1000000, s_w, v_lane)
    A("s_endpgm")
    return lds


def gen_dft(A, opt, st_aux):
    global v_pq
    XS = 32768
    H0 = 65536
    WL = H0 + 32768
    SC = H0 + 65536
    lds = H0 + 3 * 32768
    t_aux = opt.get('t_store_aux', st_aux)
    s_par, s_xo, s_ho, s_mx, s_mh = 40, 41, 42, 43, 44
    s_sig = 46
    s_wo, s_mw = 48, 49
    s_neg, s_so = 50, 51
    s_st = 52
    s_xh = 45
    vHd = 12
    vRx = 16
    vRb = 20
    vQ = 24
    vWl = 26
    vSel = 28
    vXb = 32
    vF = 48
    vT = 56
    vB = 64
    acc = 128
    aS = 128
    aC = 132
    aP = 164
    v_pq_save = v_pq
    v_pq = 0

    A("K1_dft:")
    A(f"""
    s_sub_u32 s{s_par}, s{s_g}, 14
    s_mov_b32 s{sHr+2}, {512*1024}
    s_mov_b32 s{sHr+3}, 0x20000
    s_mov_b32 s{sHi+2}, {512*1024}
    s_mov_b32 s{sHi+3}, 0x20000
    s_lshl_b32 s{s_t0}, s{s_w}, 6
    s_add_u32 s{s_t0}, s{s_t0}, s{s_par}
    v_lshlrev_b32 v{v_t2}, 1, v{v_t0}
    v_add_u32 v{v_t2}, s{s_t0}, v{v_t2}
    v_lshl_add_u32 v{vHd+2}, v{v_t2}, 10, v{v_t1}
    v_cmp_eq_u32 vcc, 0, v{v_t2}
    v_xor_b32 v{vHd+1}, 64, v{vHd+2}
    v_add_u32 v{v_t3}, {256*1024}, v{vHd+2}
    v_cndmask_b32 v{vHd}, v{vHd+2}, v{v_t3}, vcc
    v_add_u32 v{vHd+3}, {45*1024}, v{vHd+1}
    v_add_u32 v{vHd+1}, {15*1024}, v{vHd+1}
    v_add_u32 v{vHd+2}, {30*1024}, v{vHd+2}
    s_lshl_b32 s{s_xo}, s{s_a}, 10
    s_add_u32 s{s_xh}, s{s_xo}, 512
    s_lshl_b32 s{s_mx}, s{s_w}, 12
    s_lshl_b32 s{s_mh}, s{s_w}, 13
    s_add_u32 s{s_mh}, s{s_mh}, {H0}
""")
    drot = opt.get('dft_rot', 3)
    if drot == 1:
        A(f"s_lshl_b32 s{s_t0}, s{s_par}, 1\ns_add_u32 s{s_t0}, s{s_t0}, s{s_rb}\ns_lshl_b32 s{s_t0}, s{s_t0}, 7")
        for k in range(4):
            A(f"s_add_u32 s{s_st+k}, s{s_t0}, {128*k}\ns_and_b32 s{s_st+k}, s{s_st+k}, 384")
    elif drot == 11:
        A(f"s_add_u32 s{s_t0}, s{s_par}, s{s_rb}\ns_and_b32 s{s_t0}, s{s_t0}, 1\ns_lshl_b32 s{s_st}, s{s_t0}, 7")
        for k in range(1, 4):
            A(f"s_xor_b32 s{s_st+k}, s{s_st}, {128*k}")
    else:
        A(f"s_mov_b32 s{s_st}, 0")

    def dma_x(s):
        L = []
        slot = (s & 1) * XS
        for half in range(2):
            L.append(f"s_add_u32 m0, s{s_mx}, {slot+half*16384}\ns_add_u32 s{s_t2}, s{s_xh if half else s_xo}, s{s_st+s}\n"
                     f"buffer_load_dwordx4 v{vXd}, {sr(sX,4)}, s{s_t2} offen lds")
            for i in range(1, 4):
                L.append(f"buffer_load_dwordx4 v{vXd+i}, {sr(sX,4)}, s{s_t2} offen offset:{1024*i} lds")
        return L

    def dma_h(s):
        L = []
        slot = (s % 3) * 32768
        for mat, srd in enumerate((sHr, sHi)):
            L.append(f"s_add_u32 m0, s{s_mh}, {slot+mat*4096}\ns_nop 0\n"
                     f"buffer_load_dwordx4 v{vHd}, {sr(srd,4)}, s{s_st+s} offen lds")
            for i in range(1, 4):
                L.append(f"buffer_load_dwordx4 v{vHd+i}, {sr(srd,4)}, s{s_st+s} offen offset:{1024*i} lds")
        return L

    def dma_w():
        L = []
        for i in range(4):
            L.append(f"s_lshl_b32 s{s_ho}, s{s_st+i}, 3\ns_add_u32 m0, s{s_mw}, s{s_ho}\ns_mul_i32 s{s_t2}, s{s_st+i}, 688\n"
                     f"s_add_u32 s{s_t2}, s{s_t2}, s{s_wo}\nbuffer_load_dwordx4 v{vWl}, {sr(sWg,4)}, s{s_t2} offen lds")
            L.append(f"s_add_u32 m0, m0, 16384\ns_nop 0\nbuffer_load_dwordx4 v{vWl+1}, {sr(sWu,4)}, s{s_t2} offen lds")
        return L

    vm0 = []
    A("s_waitcnt lgkmcnt(0)")
    stamp(A, opt, 1)
    for x in dma_x(0): A(x)
    vm0 += ['x0'] * 8
    for x in dma_h(0): A(x)
    vm0 += ['h0'] * 8
    A("K1_dft_main:")
    if drot == 0:
        for k in range(1, 4):
            A(f"s_mov_b32 s{s_st+k}, {128*k}")
    elif drot == 3:
        A(f"s_add_u32 s{s_t0}, s{s_rb}, s{s_par}\ns_mul_i32 s{s_t1}, s{s_t0}, 21846\ns_lshr_b32 s{s_t1}, s{s_t1}, 16\n"
          f"s_mul_i32 s{s_t1}, s{s_t1}, 3\ns_sub_u32 s{s_t0}, s{s_t0}, s{s_t1}")
        for k in range(1, 4):
            A(f"s_add_u32 s{s_t0}, s{s_t0}, 1\ns_lshl_b32 s{s_st+k}, s{s_t0}, 7\ns_cmp_eq_u32 s{s_t0}, 3\ns_cselect_b32 s{s_t0}, 0, s{s_t0}")
    pf_setup(A, opt)
    G = opt.get('k1_pfg', 2)
    pf0 = opt.get('k1_pf0', 2)
    npq = (8 - pf0 + G - 1) // G if opt.get('k1_pf', 1) else 0
    for x in dma_x(1): A(x)
    vm0 += ['x1'] * 8
    if npq:
        pf_setup.n -= 1
        k1_pf_setup(A, opt)
        pf_setup.n += 1
        if pf0 == 2:
            A(k1_pf_load('v6'))
            vm0.append('p')
    A(f"""
    v_lshrrev_b32 v{v_t0}, 1, v{v_lane}
    v_and_b32 v{v_t1}, 1, v{v_lane}
    v_lshlrev_b32 v{v_t1}, 4, v{v_t1}
    v_mul_u32_u24 v{vWl}, 2752, v{v_t0}
    v_add_u32 v{vWl}, v{vWl}, v{v_t1}
    v_xor_b32 v{v_t0}, 4, v{v_t0}
    v_mul_u32_u24 v{vWl+1}, 2752, v{v_t0}
    v_add_u32 v{vWl+1}, v{vWl+1}, v{v_t1}
    s_mul_i32 s{s_wo}, s{s_w}, {128*2752}
    s_lshl_b32 s{s_t0}, s{s_par}, 5
    s_add_u32 s{s_wo}, s{s_wo}, s{s_t0}
    s_add_u32 s{s_wo}, s{s_wo}, 2688
    s_add_u32 s{s_mw}, s{s_mx}, {WL}
    s_mov_b32 s{sWs+2}, {WS_USED}
    s_mov_b32 s{sWs+3}, 0x20000
    s_cmp_eq_u32 s{s_par}, 0
    s_cselect_b32 s{s_sig}, 1.0, -1.0
    s_mov_b32 s{s_neg}, 0x80008000
    v_and_b32 v{v_t0}, 31, v{v_lane}            ; r
    v_lshrrev_b32 v{v_t1}, 5, v{v_lane}         ; h
    v_bfe_u32 v{v_t2}, v{v_lane}, 1, 3
    v_xor_b32 v{v_t2}, v{v_t2}, v{v_t1}
    v_lshlrev_b32 v{v_t2}, 4, v{v_t2}
    v_lshl_add_u32 v{v_t2}, v{v_t0}, 7, v{v_t2}
    v_add_u32 v{vRx}, s{s_mx}, v{v_t2}
    v_xor_b32 v{vRx+1}, 32, v{vRx}
    v_xor_b32 v{vRx+2}, 64, v{vRx}
    v_xor_b32 v{vRx+3}, 96, v{vRx}
    v_add_u32 v{vRb}, {H0}, v{v_t2}
    v_xor_b32 v{vRb+1}, 32, v{vRb}
    v_xor_b32 v{vRb+2}, 64, v{vRb}
    v_xor_b32 v{vRb+3}, 96, v{vRb}
""")
    make_sel(A, vSel, v_t2)
    A(f"v_lshlrev_b32 v{v_t2}, 2, v{v_t1}\nv_mul_u32_u24 v{v_t2}, v{v_t2}, v{v_t0}\nv_lshlrev_b32 v{v_t3}, 2, v{v_t0}\ns_mov_b32 s{s_t0}, {hex(f2u(1.0/32))}")
    for mp in range(4):
        for k in range(4):
            A(f"""
    v_and_b32 v{vT+k}, 31, v{v_t2}
    v_add_u32 v{v_t2}, v{v_t2}, v{v_t0}
    v_cvt_f32_u32 v{vT+k}, v{vT+k}
    v_mul_f32 v{vT+k}, s{s_t0}, v{vT+k}
    v_sin_f32 v{vT+4+k}, v{vT+k}
    v_cos_f32 v{vT+k}, v{vT+k}
""")
        A(f"v_add_u32 v{v_t2}, v{v_t2}, v{v_t3}")
        for k in range(2):
            A(f"""
    v_cvt_pk_bf16_f32 v{vT+2*k}, v{vT+2*k}, v{vT+2*k+1}
    v_cvt_pk_bf16_f32 v{vT+4+2*k}, v{vT+4+2*k}, v{vT+4+2*k+1}
    v_accvgpr_write_b32 a{aC+2*mp+k}, v{vT+2*k}
    v_accvgpr_write_b32 a{aP+2*mp+k}, v{vT+4+2*k}
    v_xor_b32 v{vT+4+2*k}, s{s_neg}, v{vT+4+2*k}
    v_accvgpr_write_b32 a{aC+8+2*mp+k}, v{vT+4+2*k}
""")

    def rd_x(n):
        ks, b, o = n & 3, n & 1, ((n >> 2) & 1) * XS
        return [f"ds_read_b128 {vr(vXb+8*b,4)}, v{vRx+ks} offset:{o}",
                f"ds_read_b128 {vr(vXb+8*b+4,4)}, v{vRx+ks} offset:{o+16384}",
                f"ds_read_b128 {ar(4*n,4)}, v{vRx+ks} offset:{o}",
                f"ds_read_b128 {ar(64+4*n,4)}, v{vRx+ks} offset:{o+16384}"]

    def rd_b(n):
        ks, b, o = n & 3, n & 1, 32768 if (n >> 2) == 1 else 0
        return [f"ds_read_b128 {vr(vB+32*b+4*j,4)}, v{vRb+ks} offset:{o+4096*j}" for j in range(8)]

    def fold(n):
        b = n & 1
        lo, hi, out = vXb + 8 * b, vXb + 8 * b + 4, vF + 4 * b
        L = []
        for k in range(4):
            t = vT + 4 * (k & 1)
            L += [f"v_lshlrev_b32 v{t}, 16, v{lo+k}",
                  f"v_and_b32 v{t+1}, 0xffff0000, v{lo+k}",
                  f"v_lshlrev_b32 v{t+2}, 16, v{hi+k}",
                  f"v_and_b32 v{t+3}, 0xffff0000, v{hi+k}",
                  f"v_fmac_f32 v{t}, s{s_sig}, v{t+2}",
                  f"v_fmac_f32 v{t+1}, s{s_sig}, v{t+3}",
                  f"v_cvt_pk_bf16_f32 v{out+k}, v{t}, v{t+1}"]
        return L

    aQ = 148

    def sqsum(n, half):
        c = '0' if n == 0 and half == 0 else ar(aQ, 16)
        x = vr(vXb + 8 * (n & 1) + 4 * half, 4)
        return f"v_mfma_f32_32x32x16_bf16 {ar(aQ,16)}, {x}, {x}, {c}"

    def rowsum(n, half):
        c = '0' if n == 0 and half == 0 else ar(aS, 4)
        return f"v_mfma_f32_16x16x32_bf16 {ar(aS,4)}, {vr(vSel,4)}, {vr(vXb+8*(n&1)+4*half,4)}, {c}"

    P = sched.Prog()
    P.wait(vm=['x0'])
    for n in (0, 1):
        for x in rd_x(n): P.ds(f'x{n}', x)
    P.wait(lg=['x0'])
    P.i(rowsum(0, 0)); P.i(rowsum(0, 1)); P.i(sqsum(0, 0)); P.i(sqsum(0, 1))
    for x in fold(0): P.i(x)
    P.wait(vm=['h0'])
    P.i("s_barrier")
    if opt.get('stamps'):
        P.i("s_memtime s[74:75]")
    for j, x in enumerate(rd_b(0)): P.ds(f'b0_{j>>2}', x)
    anchors, first, bar_at = [], {}, {}
    for n in range(16):
        s, ks, b = n >> 2, n & 3, n & 1
        first[n] = len(anchors)
        for j in range(8):
            c = '0' if n == 0 else vr(acc + 16 * j, 16)
            a = dict(text=f"v_mfma_f32_32x32x16_bf16 {vr(acc+16*j,16)}, {vr(vF+4*b,4)}, {vr(vB+32*b+4*j,4)}, {c}", cap=25)
            if j == 0:
                def pre(P, n=n):
                    vmw = [f'x{(n>>2)+1}'] if (n & 3) == 2 and n < 12 else None
                    P.wait(lg=[f'b{n}_0', f'b{n}_1'] + ([f'x{n+1}'] if n < 15 else []), vm=vmw)
                    P.i("s_nop 1")
                    if opt.get('stamps') == 2 and vmw:
                        P.i(f"s_memtime s[{76+4*(n>>2)}:{77+4*(n>>2)}]")
                a.update(pre=pre, precost=10)
            elif j == 1 and ks == 3 and s < 3:
                def pre(P, s=s):
                    P.wait(lg='all', vm=[f'h{s+1}'])
                    P.i("s_barrier")
                    if opt.get('stamps') == 2:
                        P.i(f"s_memtime s[{78+4*s}:{79+4*s}]")
                a.update(pre=pre, precost=10)
                bar_at[s] = len(anchors)
            anchors.append(a)
            if j in (2, 5) and n < 15:
                anchors.append(dict(text=rowsum(n + 1, 0 if j == 2 else 1), cap=8))
                anchors.append(dict(text=sqsum(n + 1, 0 if j == 2 else 1), cap=25))
    first[16] = len(anchors)
    last = lambda n: first[n + 1] - 1
    big = {n: [g for g in range(first[n], first[n + 1]) if anchors[g]['cap'] > 10] for n in range(16)}
    st_rd, st_va, st_dm = [], [], []
    for n in range(15):
        e = bar_at[n >> 2] if (n & 3) == 3 else first[n]
        if (n & 3) == 3 and n >= 7:
            d = 65536 if n == 7 else (-65536) & 0xffffffff
            for r in range(4):
                st_rd.append(('i', None, f"v_add_u32 v{vRb+r}, {d}, v{vRb+r}", e - 1 if r else e - 1, e + (r > 0)))
        for j, x in enumerate(rd_b(n + 1)):
            st_rd.append(('ds', f'b{n+1}_{j>>2}', x, big[n][(e > first[n]) + j // 2], last(n) - 3))
        if n + 2 < 16:
            for j, x in enumerate(rd_x(n + 2)):
                st_rd.append(('ds', f'x{n+2}', x, big[n][(e > first[n]) + 4 + j // 2], last(n) - 2))
        fl = fold(n + 1)
        for k, t in enumerate(fl):
            st_va.append(('i', None, t, first[n], last(n)))

    def add_dm(L, tag, lo, hi):
        for k, t in enumerate(L):
            e = lo + (hi - lo) * k // len(L)
            st_dm.append(('vm', tag, t, e, e + 2))
    pq = [k1_pf_load('v6').split('\n') for _ in range(max(0, npq - (pf0 == 2)))]

    def add_pq(at):
        if pq:
            ld, inc = pq.pop(0)
            st_dm.append(('vm', 'p', ld, at, at + 2))
            st_dm.append(('i', None, inc, at, at + 3))
    add_dm(dma_h(1), 'h1', 0, first[1] + 2)
    add_pq(first[1] + 2)
    add_dm(dma_x(2), 'x2', first[2], first[3] + 4)
    add_pq(first[3] + 4)
    add_dm(dma_h(2), 'h2', first[3] + 5, first[5])
    add_pq(first[5])
    add_dm(dma_x(3), 'x3', first[6], first[7] + 4)
    add_dm(dma_h(3), 'h3', first[7] + 5, first[9])
    while pq:
        add_pq(first[9])
    add_dm(dma_w(), 'w', first[9] + 1, first[opt.get('dft_wend', 15)])
    if opt.get('k2_pf', 1):
        st_dm.append(('vm', 'pf', pf_load(), first[15], first[15] + 4))
    if opt.get('d_oob'):
        A(f's_mov_b32 s{sX+2}, 0\ns_mov_b32 s{sWg+2}, 0\ns_mov_b32 s{sWu+2}, 0\ns_mov_b32 s{sHr+2}, 0\ns_mov_b32 s{sHi+2}, 0')
    if opt.get('d_nova'):
        st_va = []
    if opt.get('d_noagpr'):
        st_rd = [f for f in st_rd if ' a[' not in f[2]]
    r = sched.place(P, anchors, [st_rd, st_dm, st_va], slack=opt.get('dft_slack'))
    if opt.get('verbose'): print('dft loop slack/est', r)
    if opt.get('stamps'):
        P.i("s_memtime s[76:77]" if opt['stamps'] == 1 else "s_memtime s[88:89]")

    vS = vT + 2
    vmu, vk1, vk3, vci, vrs = vF, 8, 12, 14, vT
    vWr = vRb
    vCw = vB + 32
    vC = vQ
    vNS = vXb
    P.i(f"""
    v_bfe_u32 v{v_t2}, v{v_lane}, 2, 2
    v_lshl_add_u32 v{v_t2}, v{v_t1}, 3, v{v_t2}
    v_lshlrev_b32 v{v_t2}, 5, v{v_t2}
    v_and_b32 v{vWr+1}, 3, v{v_lane}
    v_lshl_add_u32 v{v_t2}, v{vWr+1}, 3, v{v_t2}
    v_bfe_u32 v{vWr+1}, v{v_lane}, 4, 1
    v_mul_u32_u24 v{vWr+1}, {16384+128}, v{vWr+1}
    v_add_u32 v{v_t2}, v{v_t2}, v{vWr+1}
    v_add_u32 v{vWr}, {WL}, v{v_t2}
    v_xor_b32 v{vWr+1}, 128, v{vWr}
    v_add_u32 v{vWr+2}, s{s_mx}, v{vWr}
    v_add_u32 v{vWr+3}, s{s_mx}, v{vWr+1}
    v_accvgpr_read_b32 v{vS}, a{aS}
""")
    vD = vB
    for r in range(16):
        P.i(f"v_accvgpr_read_b32 v{vD+r}, a{aQ+r}")
    P.i(f"""
    v_and_b32 v{v_t3}, 1, v{v_lane}
    v_cmp_eq_u32 vcc, 1, v{v_t3}
    v_and_b32 v{v_t3}, 2, v{v_lane}
    v_cmp_eq_u32 s[62:63], 2, v{v_t3}
""")
    for r in range(0, 16, 2):
        P.i(f"v_cndmask_b32 v{vD+r}, v{vD+r}, v{vD+r+1}, vcc")
    P.i(f"v_and_b32 v{v_t3}, 8, v{v_lane}\nv_cmp_eq_u32 vcc, 8, v{v_t3}")
    for r in range(0, 16, 4):
        P.i(f"v_cndmask_b32 v{vD+r}, v{vD+r}, v{vD+r+2}, s[62:63]")
    P.i(f"""
    v_and_b32 v{v_t3}, 16, v{v_lane}
    v_cmp_eq_u32 s[62:63], 16, v{v_t3}
    v_cndmask_b32 v{vD}, v{vD}, v{vD+4}, vcc
    v_cndmask_b32 v{vD+8}, v{vD+8}, v{vD+12}, vcc
    v_bfe_u32 v{v_t3}, v{v_lane}, 2, 1
    v_cmp_eq_u32 vcc, v{v_t3}, v{v_t1}
    v_cndmask_b32 v{vD}, v{vD}, v{vD+8}, s[62:63]
    s_nop 0
    v_cndmask_b32 v{vQ}, 0, v{vD}, vcc
""")
    P.wait(vm=['w'])
    if opt.get('stamps') == 2:
        P.i("s_memtime s[90:91]")
    for kk in range(8):
        for p in range(2):
            P.ds(f'cw{kk}', f"ds_read_b64_tr_b16 {vr(vCw+4*kk+2*p,2)}, v{vWr+2+p} offset:{512*kk}")
        if kk == 5:
            P.wait(lg=['cw1'])
    for x in stats_finalize(vS, vQ, vmu, vk1, vk3, vci, vrs, v_t3, v_t2): P.i(x)
    vRs = vB
    P.i(f"""
    s_add_u32 s{s_t0}, s{s_mx}, {SC}
    v_lshl_add_u32 v{v_t2}, v{v_lane}, 2, s{s_t0}
    v_lshl_add_u32 v{v_t3}, v{v_t1}, 4, s{s_t0}
""")
    P.ds('rsw', f"ds_write_b32 v{v_t2}, v{vrs}")
    P.i(f"v_mov_b32 v{vmu+1}, 0\nv_mov_b32 v{vmu+2}, 0\nv_mov_b32 v{vmu+3}, 0")
    P.wait(lg=['rsw'])
    for q in range(4):
        P.ds('rs', f"ds_read_b128 {vr(vRs+4*q,4)}, v{v_t3} offset:{32*q}")
    for kk in range(8):
        c = '0' if kk == 0 else vr(vC, 4)
        P.i(f"v_mfma_f32_16x16x32_bf16 {vr(vC,4)}, {vr(vSel,4)}, {vr(vCw+4*kk,4)}, {c}")
    vEx = vRx
    P.i(f"""
    v_lshlrev_b32 v{v_t3}, 4, v{v_lane}
    v_add_u32 v{vEx}, s{s_mx}, v{v_t3}
""")
    P.i("s_nop 5")
    P.ds('csw', f"ds_write_b32 v{v_t2}, v{vC} offset:1024")
    P.wait(lg=['rs'])

    def scale(T):
        L = []
        for c in (acc + 32 * T, acc + 32 * T + 16):
            for k in range(0, 16, 2):
                L.append(f"v_pk_mul_f32 {vr(c+k,2)}, {vr(c+k,2)}, {vr(vRs+k,2)}")
            for k in range(8):
                L.append(f"v_cvt_pk_bf16_f32 v{c+k}, v{c+2*k}, v{c+2*k+1}")
        return L

    def stage1(T, r1, r2):
        fa, fb = acc + 32 * T, acc + 32 * T + 16
        M = "v_mfma_f32_32x32x16_bf16"
        return [f"{M} {vr(r1,16)}, {ar(aC,4)}, {vr(fa,4)}, 0",
                f"{M} {vr(r2,16)}, {ar(aC,4)}, {vr(fb,4)}, 0",
                f"{M} {vr(r1,16)}, {ar(aC+4,4)}, {vr(fa+4,4)}, {vr(r1,16)}",
                f"{M} {vr(r2,16)}, {ar(aC+4,4)}, {vr(fb+4,4)}, {vr(r2,16)}",
                f"{M} {vr(r1,16)}, {ar(aP,4)}, {vr(fb,4)}, {vr(r1,16)}",
                f"{M} {vr(r2,16)}, {ar(aC+8,4)}, {vr(fa,4)}, {vr(r2,16)}",
                f"{M} {vr(r1,16)}, {ar(aP+4,4)}, {vr(fb+4,4)}, {vr(r1,16)}",
                f"{M} {vr(r2,16)}, {ar(aC+12,4)}, {vr(fa+4,4)}, {vr(r2,16)}"]

    def pub(T, r1, r2, e, dl):
        L = []
        for q in range(4):
            for r in range(4 * q, 4 * q + 4):
                L.append(('i', None, f"v_cvt_pk_bf16_f32 v{r1+r}, v{r1+r}, v{r2+r}", e, dl))
            L.append(('ds', f'p{T}', f"ds_write_b128 v{vEx}, {vr(r1+4*q,4)} offset:{16384*T+1024*q}", e, dl))
        return L

    def out_ops(Tp, regs, e, dl):
        L = []
        for qq in range(2):
            for w2 in range(4):
                L.append(('ds', f'o{Tp}_{qq}', f"ds_read_b128 {vr(regs+16*qq+4*w2,4)}, v{vOr} offset:{16384*Tp+4096*w2+1024*qq}", e, dl))
        for qq in range(2):
            b0 = regs + 16 * qq
            L.append(('w', [f'o{Tp}_{qq}'], None, e, dl))
            for i in range(4):
                for j in range(i + 1, 4):
                    L.append(('i', None, f"v_swap_b32 v{b0+4*i+j}, v{b0+4*j+i}", e, dl, 10))
            for r in range(4):
                L.append(('vm', 'st', f"s_add_u32 s{s_t0}, s{s_so}, {(8*qq+r)*65536+Tp*8192}\n"
                          f"buffer_store_dwordx4 {vr(b0+4*r,4)}, v{vOs}, {sr(sWs,4)}, s{s_t0} offen {t_aux}", e, dl, 25))
        return L

    vOr, vOs = vRx + 1, vRx + 2
    for x in scale(0) + scale(1): P.i(x)
    P.i(f"""
    s_lshr_b32 s{s_t1}, s{s_w}, 1
    s_and_b32 s{s_t2}, s{s_w}, 1
    s_lshl_b32 s{s_t0}, s{s_t1}, 14
    s_lshl_b32 s{s_so}, s{s_t2}, 11
    s_add_u32 s{s_t0}, s{s_t0}, s{s_so}
    v_add_u32 v{vOr}, s{s_t0}, v{v_t3}
    v_lshlrev_b32 v{vOs}, 4, v{v_t0}
    v_lshl_add_u32 v{vOs}, v{v_t1}, 18, v{vOs}
    s_lshl_b32 s{s_so}, s{s_par}, 15
    s_lshl_b32 s{s_t1}, s{s_t1}, 13
    s_add_u32 s{s_so}, s{s_so}, s{s_t1}
    s_lshl_b32 s{s_t1}, s{s_rb}, 9
    s_add_u32 s{s_so}, s{s_so}, s{s_t1}
    s_lshl_b32 s{s_t2}, s{s_t2}, 20
    s_add_u32 s{s_so}, s{s_so}, s{s_t2}
    s_add_u32 s{s_so}, s{s_so}, {T_OFF}
""")
    RA = (vB + 32, vB + 48)
    for x in scale(2) + scale(3): P.i(x)
    RB = (vB, vB + 16)
    if opt.get('stamps') == 1:
        P.i("s_memtime s[78:79]")
    MA = lambda L: [dict(text=t, cap=25) for t in L]
    for x in stage1(0, *RA): P.i(x)
    an = MA(stage1(1, *RB))
    an[2].update(pre=lambda P: P.i("s_nop 9"))
    sched.place(P, an, [pub(0, *RA, 2, 7)])
    an = MA(stage1(2, *RA))
    an[0].update(pre=lambda P: P.wait(lg=['p0']))
    an[2].update(pre=lambda P: P.i("s_nop 9"))
    sched.place(P, an, [pub(1, *RB, 2, 7)])
    P.wait(lg='all')
    P.i("s_barrier")
    RO = acc
    an = MA(stage1(3, *RB))
    sched.place(P, an, [pub(2, *RA, 3, 7), out_ops(0, RO, 0, 2)[:8]])
    rest = out_ops(0, RO, 0, 0)[8:]
    k = len(rest) // 2
    for f in rest[:k]: P.add(f)
    for f in pub(3, *RB, 0, 0): P.add(f)
    for f in rest[k:]: P.add(f)
    if opt.get('stamps') == 1:
        P.i("s_memtime s[80:81]")
    vCp = acc + 64
    P.i(f"v_lshlrev_b32 v{vEx}, 2, v{v_lane}\nv_add_u32 v{vEx}, {SC}, v{vEx}")
    P.wait(lg='all')
    for k in range(4):
        P.i(f"s_lshl_b32 s{s_t0}, s{s_st+k}, 4\nv_add_u32 v{vB+32+2*k}, s{s_t0}, v{vWr}\nv_add_u32 v{vB+33+2*k}, s{s_t0}, v{vWr+1}")
    P.i("s_barrier")
    for w2 in range(4):
        P.ds('cp', f"ds_read_b32 v{vCp+w2}, v{vEx} offset:{4096*w2+1024}")
    accL = acc + 80
    vWf = vB
    NB = 4

    vWs = vB + 32

    def rd_w(kk):
        return [f"ds_read_b64_tr_b16 {vr(vWf+4*(kk%NB)+2*p,2)}, v{vWs+2*((kk>>2)&3)+p} offset:{8192*(kk>>4)+512*(kk&3)}" for p in range(2)]
    for kk in range(NB - 1):
        for x in rd_w(kk): P.ds(f'l{kk}', x)
    an = []
    st_rd = []
    for kk in range(32):
        c = '0' if kk == 0 else vr(accL, 16)
        an.append(dict(text=f"v_mfma_f32_32x32x16_bf16 {vr(accL,16)}, {vr(vWf+4*(kk%NB),4)}, {ar(4*kk,4)}, {c}", cap=25,
                       pre=lambda P, kk=kk: P.wait(lg=[f'l{kk}']), precost=5))
        if kk + NB - 1 < 32:
            for x in rd_w(kk + NB - 1):
                st_rd.append(('ds', f'l{kk+NB-1}', x, kk, kk))
    cs = [f"v_add_f32 v{vCp}, v{vCp}, v{vCp+1}", f"v_add_f32 v{vCp+2}, v{vCp+2}, v{vCp+3}", f"v_add_f32 v{vCp}, v{vCp}, v{vCp+2}"]
    cs += split_hilo(vSel, vCp, vCp + 1)
    sched.place(P, an, [st_rd, out_ops(2, acc + 32, 0, 30), [('i', None, t, 20, 29) for t in cs]])
    if opt.get('stamps') == 1:
        P.i("s_memtime s[82:83]")
    P.i(f"""
    v_mfma_f32_32x32x16_bf16 {vr(accL,16)}, {vr(vSel,4)}, {vr(vmu,4)}, {vr(accL,16)}
    s_mul_i32 s{s_so}, s{s_a}, 86
    s_add_u32 s{s_so}, s{s_so}, s{s_par}
    s_add_u32 s{s_so}, s{s_so}, 84
    s_lshl_b32 s{s_so}, s{s_so}, 10
    s_nop 7
""")
    for x in gelu_unit(accL, vWf + 24, vWf + 16, vk1, vk3, vci):
        P.i(x)
    P.i(f"buffer_store_dwordx4 {vr(vWf+16,4)}, v{v_t3}, {sr(sWs,4)}, s{s_so} offen {st_aux}")
    P.emit(A, vm0=vm0)
    if opt.get('stamps'):
        A("s_waitcnt vmcnt(0)")
        if opt['stamps'] == 1:
            stamp(A, opt, 7)
        emit_stamp_store(A, 8 if opt['stamps'] == 1 else 11, sWs, 0x1000000, s_w, v_lane)
    v_pq = v_pq_save
    return lds
```
